```python
import torch

def _softmax(x, axis=-1):
    return torch.softmax(x, dim=axis)

def _gelu(x):
    return torch.nn.functional.gelu(x, approximate='tanh')

def _silu(x):
    return torch.nn.functional.silu(x)

def _sigmoid(x):
    return torch.sigmoid(x)

def _layernorm(x, axis=-1, eps=1e-05):
    m = x.mean(dim=axis, keepdim=True)
    v = x.var(dim=axis, keepdim=True, unbiased=False)
    return (x - m) / torch.sqrt(v + eps)

def _scatter_add(tgt, idx, src, axis=0):
    return tgt.clone().index_add_(axis, idx, src)

def _segment_sum(src, seg, n):
    out = torch.zeros((n,) + src.shape[1:], dtype=src.dtype)
    return out.index_add_(0, seg, src)

def _pad(x, pw):
    flat = tuple((v for pair in reversed(pw) for v in pair))
    return torch.nn.functional.pad(x, flat)
kernel_name = 'concat_heads__spectral_gfnet__memory_aug_recurrent_mem_tr__prompt'

def setup_inputs():

    _w = lambda a: (lambda t: t.to(torch.bfloat16) if t.is_floating_point() else t)(torch.as_tensor(a))

    def _A_setup():
        B, S, D = (1, 2048, 512)
        Df = D // 2 + 1
        return {'x': _w((lambda *s: torch.randn(*s, dtype=torch.bfloat16) * 0.05)(B, S, D)), 'w_r': _w((lambda *s: torch.randn(*s, dtype=torch.bfloat16) * 3.2)(S, Df) * 0.02), 'w_i': _w((lambda *s: torch.randn(*s, dtype=torch.bfloat16) * 3.2)(S, Df) * 0.02)}
    _A_in = _A_setup()

    def _B_setup():
        B, S, Dm = (1, 2048, 512)
        H, Dh = (32, 128)
        M, seg = (8, 32)
        seg = min(seg, S)
        S = S // seg * seg
        return {'x': _w((lambda *s: torch.randn(*s, dtype=torch.bfloat16) * 0.05)(B, S, Dm)), 'mem0': _w((lambda *s: torch.randn(*s, dtype=torch.bfloat16) * 0.4)(B, M, Dm)), 'Wq': _w((lambda *s: torch.randn(*s, dtype=torch.bfloat16) * 6.4)(Dm, H, Dh) * Dm ** (-0.5)), 'Wk': _w((lambda *s: torch.randn(*s, dtype=torch.bfloat16) * 6.4)(Dm, H, Dh) * Dm ** (-0.5)), 'Wv': _w((lambda *s: torch.randn(*s, dtype=torch.bfloat16) * 0.4)(Dm, H, Dh) * Dm ** (-0.5)), 'Wo': _w((lambda *s: torch.randn(*s, dtype=torch.bfloat16) * 0.4)(H, Dh, Dm) * (H * Dh) ** (-0.5)), 'seg_len': seg}
    _B_in = _B_setup()
    return {'A_x': _A_in['x'], 'A_w_r': _A_in['w_r'], 'A_w_i': _A_in['w_i'], 'B_x': _B_in['x'], 'B_mem0': _B_in['mem0'], 'B_Wq': _B_in['Wq'], 'B_Wk': _B_in['Wk'], 'B_Wv': _B_in['Wv'], 'B_Wo': _B_in['Wo'], 'B_seg_len': _B_in['seg_len']}

def reference(A_x, A_w_r, A_w_i, B_x, B_mem0, B_Wq, B_Wk, B_Wv, B_Wo, B_seg_len):

    def _A_ref(x, w_r, w_i):
        B, S, D = x.shape
        X = (lambda x, axes=(-2, -1): torch.fft.rfft2(x.float(), dim=axes))(x, axes=(-2, -1))
        W = w_r + 1j * w_i
        X = X * W
        y = (lambda x, s, axes=(-2, -1): torch.fft.irfft2(x, s=s, dim=axes).to(torch.bfloat16))(X, (S, D), axes=(-2, -1))
        return y

    def _B_ref(x, mem0, Wq, Wk, Wv, Wo, seg_len):
        B, S, Dm = x.shape
        H, Dh = (Wq.shape[1], Wq.shape[2])
        M = mem0.shape[1]
        scale = Dh ** (-0.5)
        n_seg = S // seg_len
        L = M + seg_len
        idx = torch.arange(L)
        mask = (idx[:, None] < M) | (idx[:, None] >= idx[None, :])
        mem = mem0
        outs = []
        for s in range(n_seg):
            xs = x[:, s * seg_len:(s + 1) * seg_len, :].clone()
            h = torch.concatenate([mem, xs], axis=1)
            q = torch.einsum('btd,dhe->bhte', h, Wq)
            k = torch.einsum('btd,dhe->bhte', h, Wk)
            v = torch.einsum('btd,dhe->bhte', h, Wv)
            scores = torch.einsum('bhqe,bhke->bhqk', q, k) * scale
            scores = torch.where(mask[None, None], scores, -1000000000.0)
            p = _softmax(scores, axis=-1)
            o = torch.einsum('bhqk,bhke->bhqe', p, v)
            o = torch.einsum('bhte,hed->btd', o, Wo)
            mem = o[:, :M, :].clone()
            outs.append(o[:, M:, :])
        return torch.concatenate(outs, axis=1)
    a = _A_ref(A_x, A_w_r, A_w_i)
    b = _B_ref(B_x, B_mem0, B_Wq, B_Wk, B_Wv, B_Wo, B_seg_len)
    return torch.concatenate([a, b], axis=-1)
```

```python
def kernel_footer(name, nv=512, acc=256, nsgpr=100, kernarg=104):
    return f"""
.section .rodata,"a"
.p2align 6
.amdhsa_kernel {name}
  .amdhsa_next_free_vgpr {nv}
  .amdhsa_next_free_sgpr {nsgpr}
  .amdhsa_accum_offset {acc}
  .amdhsa_group_segment_fixed_size 0
  .amdhsa_kernarg_size {kernarg}
  .amdhsa_user_sgpr_count 2
  .amdhsa_user_sgpr_kernarg_segment_ptr 1
  .amdhsa_system_sgpr_workgroup_id_x 1
.end_amdhsa_kernel
.text
"""
def kernel_header(name):
    return f""".globl {name}
.p2align 8
.type {name},@function
{name}:
"""
HEAD = '.amdgcn_target "amdgcn-amd-amdhsa--gfx950"\n.text\n'
```

```python
from emit import *
from layout import *
import math, struct
def f2u(x): return struct.unpack("<I",struct.pack("<f",x))[0]
vLin,vW,vP,vA,vB,vKx,vVx,vWrKO,vRdO,vRdK,vWrQ,vRdQ,vWrP,vOn,vIdx,tC0,tC1,t2,t3,t4=range(20)
MF=20; AQ=52; AK=60; AV=68; SX=76; SM_=80; QF0=84; QF1=92; KXR=100; VB0=108; VB1=116; P=124; W0=128; W1=136; WV=144
VZ=VB0+1
sWS=8; sWT=12; sH=16; sW=17; sS=18; sPar=19; sParL=20; sRed=21; sCur=22; sNext=23; sKx=24; sVx=25; sC=26; sSent=27
sT0=28; sT1=29; sRetry=30; sBound=31; sPh=32; sArmM=33; sFirst=34; sKm=35; sT2=36; sT3=37; sM=38
sEnd=40; sClk=42
sStat=44
L_MEM=0; L_PX=0; L_QO=8192; L_K=12800; L_RA=14848; L_ONES=15872; L_ZERO=15904; L_MISC=15920; L_W=16384; WREG=36864
MAXSPIN=2000000
ORDER=[("Q",i&1,i>>1) for i in range(8)]+[("Q",0,k) for k in range(4,8)]+[("Q",1,k) for k in range(4,8)]
ORDER+=[("K",t,k) for t in range(2) for k in range(8)]+[("V",t,k) for t in range(2) for k in range(8)]+[("O",t,k) for t in range(8) for k in range(2)]
def slot_of(mat,t,ks): return ORDER.index((mat,t,ks))
LDS_CHUNKS=[("Q",0,0),("Q",1,0),("Q",7,0),("K",2,0),("K",6,0),("V",5,0),("O",0,0),("O",0,2),("O",1,3)]
ALL_CHUNKS=[(m,ks,0) for m in "QKV" for ks in range(8)]+[("O",ks,tp) for tp in range(4) for ks in range(2)]
REG_CHUNKS=[c for c in ALL_CHUNKS if c not in LDS_CHUNKS]
LOC={}
def _place():
    n=0
    for (m,ks,tp) in REG_CHUNKS:
        for tau in range(2):
            LOC[slot_of(m,2*tp+tau,ks)]=("a",8*n) if n<32 else ("v",WV+8*(n-32)); n+=1
    assert n==46
    for i,(m,ks,tp) in enumerate(LDS_CHUNKS):
        ring=(len(REG_CHUNKS)+i)%9
        for tau in range(2): LOC[slot_of(m,2*tp+tau,ks)]=("l",ring*4096+tau*2048)
_place()
WIN={0:(QF0,None),1:(QF1,None),2:(W0,None),3:(W1,None),11:(W0,(2,6)),15:(W1,(7,8)),18:(W0,(11,12)),22:(W1,(15,16)),26:(W0,(18,20)),30:(W1,(22,24)),
     37:(W0,(31,32)),45:(W1,(35,36)),48:(W0,(40,41)),50:(W1,(45,46)),56:(W0,(48,49)),58:(W1,(50,52)),61:(QF1,(53,55)),63:(W0,(56,58))}
assert set(WIN)=={k for k,x in LOC.items() if x[0]=="l"}, sorted(k for k,x in LOC.items() if x[0]=="l")
def wop(sl):
    k,r=LOC[sl]
    return a(r,8) if k=="a" else v(r,8) if k=="v" else v(WIN[sl][0],8)
def wtxt(sl,half): return f"ds_read_b128 {v(WIN[sl][0]+4*half,4)}, {v(vW)} offset:{LOC[sl][1]+1024*half}"
def SMF(e,d,A,B,abid=0):
    e(f"v_smfmac_f32_16x16x64_bf16 {v(d,4)}, {v(A,4)}, {B}, {v(vIdx)}"+(" abid:1" if abid else ""))
WSR=s(sWS,4)
TID=MF+31; X=MF+30; Y=MF+29; Z=MF+28

def dma_addr(e, dQ, dO, dT):
    col=Z
    e(f"v_bfe_u32 {v(X)}, {v(TID)}, 1, 3", f"v_bfe_u32 {v(Y)}, {v(TID)}, 4, 2", f"v_xor_b32 {v(X)}, {v(X)}, {v(Y)}", f"v_lshlrev_b32 {v(X)}, 5, {v(X)}")
    e(f"v_and_b32 {v(Y)}, 1, {v(TID)}", f"v_lshl_add_u32 {v(col)}, {v(Y)}, 4, {v(X)}")
    e(f"s_lshl_b32 {s(sT0)}, {s(sH)}, 8")
    lin(e,dQ,TID,[(4,1,16<<13),(5,1,2<<13),(6,1,128<<13),(7,1,8<<13)],tmp=X,base=s(sT0))
    e(f"v_add_u32 {v(dQ)}, {v(dQ)}, {v(col)}", f"v_xor_b32 {v(dQ+1)}, 128, {v(dQ)}")
    if dO is not None:
        e(f"s_lshl_b32 {s(sT0)}, {s(sH)}, 17")
        lin(e,dO,TID,[(5,1,16<<10),(4,1,1<<10),(6,1,2<<10),(7,1,8<<10)],tmp=X,base=s(sT0))
        e(f"v_add_u32 {v(dO)}, {v(dO)}, {v(col)}", f"v_xor_b32 {v(dO+1)}, 128, {v(dO)}")
def tr_addr(e, dT, lw, wreg):
    e(f"v_bfe_u32 {v(X)}, {v(TID)}, 2, 3", f"v_bfe_u32 {v(Y)}, {v(TID)}, 6, 2", f"v_lshlrev_b32 {v(Y)}, 1, {v(Y)}", f"v_xor_b32 {v(Z)}, {v(X)}, {v(Y)}")
    lin(e,Y,TID,[(2,4,256),(0,2,8)],tmp=X)
    e(f"v_lshl_add_u32 {v(Y)}, {v(Z)}, 5, {v(Y)}")
    for rr in range(4): e(f"v_add_u32 {v(dT+2*rr)}, {lw+rr*wreg}, {v(Y)}", f"v_xor_b32 {v(dT+2*rr+1)}, 32, {v(dT+2*rr)}")

class Stager:
    def __init__(self,e,order,dest,ptrs,dQ,dO,dT,nring,lw,wreg,flags=""):
        self.__dict__.update(locals()); self.toks={}; self.cur=None
    def start(self):
        e=self.e
        e(f"s_mul_i32 {s(sT2)}, {s(sW)}, {self.wreg}", f"s_add_u32 {s(sT2)}, {s(sT2)}, {self.lw}")
        e(f"s_mov_b32 {s(sWT+2)}, 0x400000", f"s_mov_b32 {s(sWT+3)}, 0x20000")
        for n in range(min(self.nring,len(self.order))): self.issue(n)
    def issue(self,n):
        e=self.e; m,ks,tp=self.order[n]
        if self.cur!=m:
            e(f"s_mov_b32 {s(sWT)}, {s(self.ptrs[m])}", f"s_mov_b32 {s(sWT+1)}, {s(self.ptrs[m]+1)}"); self.cur=m
        tk=[]
        for gb in range(4):
            if m!="O": so=(256*(ks>>2)+32*(ks&3)+4*(gb>>1)+(gb&1))*8192; va=self.dQ+(gb&1)
            else: so=(64*ks+32*(gb&1)+4*(gb>>1))*1024+tp*256; va=self.dO+(gb&1)
            e(f"s_add_u32 m0, {s(sT2)}, {(n%self.nring)*4096+gb*1024}", f"s_mov_b32 {s(sT0)}, {so}")
            tk.append(e.vmop(f"buffer_load_dwordx4 {v(va)}, {s(sWT,4)}, {s(sT0)} offen {self.flags} lds"))
        self.toks[n]=tk
    def finish(self,convert=None):
        e=self.e; N=len(self.order); R=self.nring
        for n in range(N+1):
            if n<N: e.wait(self.toks[n])
            e("s_barrier")
            if n>=1 and n-1+R<N: self.issue(n-1+R)
            if n>=1 and convert: convert(n-1)
            if n==N: break
            for tau in range(2):
                for ridx in range(4):
                    e.lgop(f"ds_read_b64_tr_b16 {self.dest(n,tau,ridx)}, {v(self.dT+2*ridx+tau)} offset:{(n%R)*4096}")
            e.drain(vm=False)
        e.drain(vm=False)

def prologue_addr(e, name):
    lin(e,vLin,TID,[(0,6,16)])
    lin(e,vW,TID,[(0,6,16),(6,2,WREG)],L_W,tmp=X)
    e(f"s_lshl_b32 {s(sT0)}, {s(sH)}, 7")
    lin(e,vP,TID,[(3,5,8192),(0,3,16)],tmp=X,base=s(sT0))
    lin(e,vKx,TID,[(2,1,1024),(3,1,512),(0,1,256),(1,1,64),(4,2,16)],tmp=X)
    lin(e,vVx,TID,[(0,4,64),(4,2,16)],tmp=X)
    lin(e,Y,TID,[(4,2,1),(2,2,1)],tmp=X); e(f"v_and_b32 {v(Y)}, 3, {v(Y)}")
    lin(e,vWrKO,TID,[(6,2,512),(0,4,32)],tmp=X); e(f"v_lshl_add_u32 {v(vWrKO)}, {v(Y)}, 3, {v(vWrKO)}")
    lin(e,vWrQ,TID,[(6,2,1152),(1,3,136),(0,1,64),(4,2,8)],L_QO,tmp=X)
    lin(e,Z,TID,[(2,4,32)])
    lin(e,Y,TID,[(4,2,1),(0,2,1)],tmp=X); e(f"v_and_b32 {v(Y)}, 3, {v(Y)}", f"v_lshl_add_u32 {v(vRdO)}, {v(Y)}, 3, {v(Z)}")
    lin(e,Y,TID,[(4,2,1),(0,1,2),(1,1,1)],tmp=X); e(f"v_and_b32 {v(Y)}, 3, {v(Y)}", f"v_lshl_add_u32 {v(vRdK)}, {v(Y)}, 3, {v(Z)}")
    lin(e,vRdQ,TID,[(4,1,1152),(5,1,272),(2,1,64),(3,1,32),(0,2,8)],tmp=X)
    lin(e,vWrP,TID,[(4,1,508),(7,1,256),(2,2,64),(5,1,32),(0,1,16),(6,1,8)],4,tmp=X)
    lin(e,vOn,TID,[(5,1,16)])
    e(f"v_mov_b32 {v(vIdx)}, 0xEEEEEEEE", f"v_mov_b32 {v(X)}, 0x4E444444", f"v_mov_b32 {v(Y)}, 0x44E44444")
    e(f"v_cmp_eq_u32 vcc, 0, {v(vOn)}", f"v_and_b32 {v(Z)}, 2, {v(TID)}", f"v_cndmask_b32 {v(X)}, {v(Y)}, {v(X)}, vcc")
    e(f"v_cmp_eq_u32 vcc, 0, {v(Z)}", f"v_cndmask_b32 {v(vIdx)}, {v(vIdx)}, {v(X)}, vcc")
    r0=MF
    e(f"v_mov_b32 {v(X)}, 0x3f80"); lin(e,Y,TID,[(0,1,16)]); e(f"v_lshlrev_b32 {v(X)}, {v(Y)}, {v(X)}", f"v_cndmask_b32 {v(X)}, 0, {v(X)}, vcc")
    e(f"v_bfe_u32 {v(Y)}, {v(TID)}, 2, 2")
    for k in range(4): e(f"v_cmp_eq_u32 vcc, {k}, {v(Y)}", f"v_cndmask_b32 {v(r0+k)}, 0, {v(X)}, vcc")
    e.lgop(f"ds_write_b128 {v(vLin)}, {v(r0,4)} offset:{L_RA}")
    for k in range(16): e(f"v_mov_b32 {v(VB0+k)}, 0")
    for k,x in enumerate((0x3f003f00,0x3f803f80,0,0x3f803f80,0x3f803f80,0,0x3f803f80,0x3f003f00)): e(f"v_mov_b32 {v(r0+4+k)}, {x}")
    e.lgop(f"ds_write_b128 {v(VZ)}, {v(r0+4,4)} offset:{L_ONES}")
    e.lgop(f"ds_write_b128 {v(VZ)}, {v(r0+8,4)} offset:{L_ONES+16}")
    e.lgop(f"ds_write_b128 {v(VZ)}, {v(VB0,4)} offset:{L_ZERO}")
    lin(e,tC0,TID,[(2,2,2048),(0,1,1024),(4,2,8),(1,1,4),(6,1,128),(7,1,512)],tmp=X)
    e(f"s_lshr_b32 {s(sT0)}, {s(sH)}, 3", f"s_lshl_b32 {s(sT0)}, {s(sT0)}, 10", f"s_and_b32 {s(sT1)}, {s(sH)}, 1", f"s_lshl_b32 {s(sT1)}, {s(sT1)}, 9", f"s_add_u32 {s(sT0)}, {s(sT0)}, {s(sT1)}")
    e(f"s_and_b32 {s(sT1)}, {s(sH)}, 6", f"s_lshl_b32 {s(sT1)}, {s(sT1)}, 5", f"s_add_u32 {s(sT0)}, {s(sT0)}, {s(sT1)}")
    lin(e,vA,TID,[(6,1,4096),(2,1,256),(1,1,32),(5,1,16),(0,1,8),(4,1,4),(3,1,1<<30)],tmp=X,base=s(sT0))
    lin(e,vB,TID,[(0,6,64),(1,4,4)],tmp=X)
    e(f"s_lshl_b32 {s(sT0)}, {s(sH)}, 1", f"s_add_u32 {s(sT0)}, {s(sT0)}, {s(sW)}", f"s_and_b32 {s(sT0)}, {s(sT0)}, 7", f"s_lshl_b32 {s(sT0)}, {s(sT0)}, 7")
    lin(e,SX,TID,[(0,5,4)],FLAG,base=s(sT0))
    e(f"s_lshl_b32 {s(sT0)}, {s(sH)}, 2")
    lin(e,SX+1,TID,[(0,3,128),(3,3,1<<28)],FLAG,tmp=X,base=s(sT0))
    lab=e.newlabel(name+"_ra")
    e(f"s_cmp_lt_u32 {s(sW)}, 2", f"s_cbranch_scc1 {lab}")
    e(f"v_mov_b32 {v(vA)}, {v(vB)}")
    e(f"s_lshl_b32 {s(sT0)}, {s(sH)}, 7", f"s_add_u32 {s(sT0)}, {s(sT0)}, {KVRDY}", f"v_and_b32 {v(X)}, 63, {v(TID)}", f"v_min_u32 {v(X)}, {NWORK-1}, {v(X)}", f"v_lshl_add_u32 {v(vB)}, {v(X)}, 2, {s(sT0)}")
    e(f"s_cmp_eq_u32 {s(sW)}, 2", f"s_cbranch_scc1 {lab}")
    lin(e,vB,TID,[(0,6,128)])
    e.label(lab)

def idle_work(e):
    e(f"v_mfma_f32_32x32x1_2b_f32 {v(AQ,32)}, {v(VZ)}, {v(VZ)}, 0")
    return [e.lgop(wtxt(sl,h)) for sl in range(4) for h in range(2)]
def kx_txt(ks): return f"buffer_load_dwordx4 {v(KXR+4*ks,4)}, {v(vKx)}, {WSR}, {s(sKx)} offen offset:{128*ks} sc1"
def vx_txt(t): return f"buffer_load_dwordx4 {v(VB0+8*t+2,4)}, {v(vVx)}, {WSR}, {s(sVx)} offen offset:{1024*t} sc1"
def kv_loads(e): return [e.vmop(x) for x in (kx_txt(0),kx_txt(1),vx_txt(0),vx_txt(1))]
def dma(e): return [e.vmop(f"buffer_load_dwordx4 {v(vLin)}, {WSR}, {s(sCur)} offen offset:{1024*k} sc1 lds") for k in range(4)]
NOADV=[False]
def step_scalars(e, role):
    e(f"s_add_u32 {s(sS)}, {s(sS)}, 1", f"s_bfe_u32 {s(sPh)}, {s(sS)}, 0x10001")
    e(f"s_xor_b32 {s(sPar)}, {s(sPar)}, 0x40000", f"s_xor_b32 {s(sParL)}, {s(sParL)}, 0x40000")
    if role<2: e(f"s_xor_b32 {s(sRed)}, {s(sRed)}, 0x40000", f"s_add_u32 {s(sKm)}, {s(sKm)}, 8192")
    if not NOADV[0]: e(f"s_add_u32 {s(sKx)}, {s(sKx)}, 0x40000", f"s_add_u32 {s(sVx)}, {s(sVx)}, 0x40000")
def touch_scalars(e):
    e(f"s_min_u32 {s(sT0)}, {s(sT0)}, 63", f"s_lshl_b32 {s(sT0)}, {s(sT0)}, 18", f"s_lshl_b32 {s(sT1)}, {s(sH)}, 13", f"s_add_u32 {s(sT0)}, {s(sT0)}, {s(sT1)}")
    e(f"s_add_u32 {s(sT1)}, {s(sT0)}, {VT}", f"s_add_u32 {s(sT0)}, {s(sT0)}, {KX}")
def add(d,x,y): return f"v_add_f32 {v(d)}, {v(x)}, {v(y)}"
def mul(d,x,y): return f"v_mul_f32 {v(d)}, {v(x)}, {v(y)}"
def cvt(d,x,y): return f"v_cvt_pk_bf16_f32 {v(d)}, {v(x)}, {v(y)}"

def loop(e, name, role, st, T, stamp=None):
    N=f"{name}_r{role}"
    STS=T.get("STS"); XX=T.get("X","")
    vCan=vB if role<2 else vA
    NOADV[0]=("t" in XX)
    def ST(i,force=False):
        if stamp and (force or i==0 or not STS): e(f"s_memtime {s(64+2*i,2)}")
    S=Sched(e); tk=S.tk; LG=S.LG; VM=S.VM
    def stamps():
        if STS:
            for n,k in enumerate(STS):
                if any(x["key"]==k for x in S.slots): S.add(k,"S",lambda n=n: ST(n+1,True))
    def ftxt(k): return f"ds_read_b128 {v(MF+4*k,4)}, {v(vLin)} offset:{L_MEM+1024*k}"
    def ctxt(h): return f"ds_read_b32 {v(tC0+h)}, {v(vCan)} offset:{L_MEM+4096*h}"
    def frag(k): return LG(f"f{k}",ftxt(k))
    NB=T["NB2"]
    if role==1:
        e.label(N+"_entry"); e("s_barrier"); e(ctxt(0)); [e(ftxt(k)) for k in range(4)]; e(f"s_branch {N}_h2")
    else: e.label(N+"_entry")
    e(".p2align 6")
    e.label(N+"_head")
    e.forget()
    tk["dA"]=[Tok("dA") for _ in range(4)]; tk["dB"]=[Tok("dB") for _ in range(4*(NB-1))]
    e.vm=list(tk["dA"]) if role==1 else list(tk["dB"]) if role==0 else []
    e("s_barrier")
    ST(0)
    LG("c0",ctxt(0))()
    for k in range(4): frag(k)()
    kvt=[("kx",kx_txt(0)),("kx",kx_txt(1)),("vx",vx_txt(0)),("vx",vx_txt(1))]
    if role==1:
        if NB>1: tk["dB"]=dma(e)
        e.label(N+"_h2")
    def MM(sl,need=()):
        m,t,ks=ORDER[sl]; need=list(need)
        if sl in WIN and sl>3: need.append(f"w{sl}")
        d={"Q":AQ,"K":AK,"V":AV,"O":MF}[m]+4*t; A=(QF0 if m=="O" else MF)+4*ks
        S.mm(sl,lambda: SMF(e,d,A,wop(sl)),need)
    def wins(lo,hi):
        for sl,(b,iss) in WIN.items():
            if iss:
                for h in range(2):
                    if lo<=iss[h]<hi: S.add(iss[h],"D",LG(f"w{sl}",wtxt(sl,h)))
    for i in range(16): MM(i,[f"f{ORDER[i][2]}"])
    for i in range(16,48):
        MM(i)
        if i==T["SX"]:
            S.mm("sx0",lambda: SMF(e,SX,KXR,v(QF0,8)),["q0","kx"]); S.mm("sx1",lambda: SMF(e,SX,KXR+4,v(QF1,8)),["q1"])
        if i==T["SM"]:
            S.mm("sm0",lambda: SMF(e,SM_,KXR,v(QF0,8)),["k0"]); S.mm("sm1",lambda: SMF(e,SM_,KXR+4,v(QF1,8)),["k1"])
    e.wait(tk["c0"])
    e(f"v_cmp_eq_u32 vcc, {s(sSent)}, {v(tC0)}")
    e.label(N+"_q0")
    S.add(1,"S",f"s_cbranch_vccnz {N}_y0"); S.add(1,"S",N+"_y0r:")
    B2=T["B2"]
    if role==1: S.add(B2,"W","dA")
    S.add(B2,"S","s_barrier")
    S.add(B2,"D",LG("c1",ctxt(1))); S.add(B2,"D",frag(4)); S.add(B2+1,"D",frag(5)); S.add(B2+1,"D",frag(6)); S.add(B2+2,"D",frag(7))
    S.add(6,"W","c1"); S.add(6,"V",f"v_cmp_eq_u32 vcc, {s(sSent)}, {v(tC1)}")
    S.add(7,"S",f"s_cbranch_vccnz {N}_y1"); S.add(7,"S",N+"_y1r:")
    wins(0,48)
    for n,(nm,x) in enumerate(kvt): S.add(T["KV"][role][n],"D",VM(nm,x))
    if role<2:
        S.add(T["HS"][role],"D",VM("hist",f"buffer_store_dword {v(t2)}, {v(vA)}, {WSR}, {s(sKm)} offen sc1"))
        S.add(T["HS"][2+role],"D",VM("arm",f"buffer_store_dword {v(t3)}, {v(vA)}, {WSR}, {s(sArmM)} offen {st}"))
    if role==2: S.add(T["HS"][4],"D",VM("rdy",f"buffer_load_dword {v(t3)}, {v(vB)}, {WSR}, 0 offen sc1"))
    if role==3 and "t" not in XX:
        S.add(T["TC"][0],"D",VM("tch",f"buffer_load_dword {v(t3)}, {v(vB)}, {WSR}, {s(sT0)} offen sc1"))
        S.add(T["TC"][1],"D",VM("tch",f"buffer_load_dword {v(t3)}, {v(vB)}, {WSR}, {s(sT1)} offen sc1"))
    if stamp: S.add(15,"S",lambda: ST(1))
    def qpost(t):
        b=AQ+4*t
        return [f"v_mul_f32 {v(b)}, {s(sC)}, {v(b)}", f"v_mul_f32 {v(b+1)}, {s(sC)}, {v(b+1)}", f"v_fma_f32 {v(b)}, {v(b+2)}, {s(sC)}, {v(b)}", f"v_fma_f32 {v(b+1)}, {v(b+3)}, {s(sC)}, {v(b+1)}", cvt(b+2,b,b+1),
                f"ds_write2_b32 {v(vWrQ)}, {v(b+2)}, {v(b+2)} offset0:{8*t} offset1:{8*t+1}"]
    for t in range(2):
        qp=qpost(t)
        for n,x in enumerate(qp[:5]): S.add(T["QP"][t][n],"V",x)
        S.add(T["QP"][t][5],"D",LG("qw",qp[5]))
    CK=T["CK"]; assert T["QP"][1][5]<CK+2
    S.add(CK,"V",f"v_cmp_u_f32 vcc, {v(AQ)}, {v(AQ+1)}")
    S.add(CK+2,"S",f"s_cbranch_vccnz {N}_x"); S.add(CK+2,"S",N+"_xr:")
    QB=T["QB"]
    S.add(QB,"W","qw"); S.add(QB,"W","dB"); S.add(QB,"S","s_barrier")
    for q in range(8):
        kk,ridx=q>>2,q&3
        S.add(QB,"D",LG(f"q{kk}",f"ds_read_b64_tr_b16 {v(QF0+8*kk+2*ridx,2)}, {v(vRdQ)} offset:{L_QO+2304*kk+544*(ridx>>1)+136*(ridx&1)}"),off=T["QR"][q])
    if stamp: S.add(31,"S",lambda: ST(2))
    for n,x in enumerate([add(AK,AK,AK+2),add(AK+1,AK+1,AK+3),cvt(AK+2,AK,AK+1)]): S.add(25+n,"V",x)
    for n,x in enumerate([add(AK+4,AK+4,AK+6),add(AK+5,AK+5,AK+7),cvt(AK+3,AK+4,AK+5)]): S.add(31,"V",x,off=T["KP"][n])
    S.add(31,"D",LG("kw",f"ds_write_b64 {v(vWrKO)}, {v(AK+2,2)} offset:{L_K}"),off=T["KP"][2]+1)
    for n in range(2): S.add(T["ZQ"][n],"D",LG("zq",f"ds_read_b128 {v(AQ+4*n,4)}, {v(VZ)} offset:{L_ZERO}"))
    for n,x in enumerate([add(SX,SX,SX+2),add(SX+1,SX+1,SX+3),f"v_exp_f32 {v(SX+2)}, {v(SX)}",f"v_exp_f32 {v(SX+3)}, {v(SX+1)}",cvt(SX+2,SX+2,SX+3)]): S.add("sx1","V",x,off=T["XP"][n])
    S.add("sx1","D",LG("pw",f"ds_write_b32 {v(vWrP)}, {v(SX+2)} offset:{L_PX}"),off=T["XP"][4]+1)
    KB=T["KB"]
    S.add(KB,"W","kw"); S.add(KB,"S","s_barrier")
    for q in range(4): S.add(KB,"D",LG(f"k{q>>1}",f"ds_read_b64_tr_b16 {v(KXR+2*q,2)}, {v(vRdK)} offset:{L_K+512*q}"),off=q//2)
    PB=T["PB"]
    S.add(PB,"W","pw"); S.add(PB,"S","s_barrier")
    S.add(PB,"D",LG("pr",f"ds_read_b128 {v(P,4)}, {v(vLin)} offset:{L_PX}"))
    S.add(T["ON"],"D",LG("ones",f"ds_read_b128 {v(AK+4,4)}, {v(vOn)} offset:{L_ONES}"))
    for n,x in enumerate([add(AV,AV,AV+2),add(AV+1,AV+1,AV+3),cvt(VB0,AV,AV+1),cvt(VB0+6,AV,AV+1)]): S.add(39,"V",x,off=T["VP"][n])
    pmov=[f"v_mov_b32_dpp {v(P)}, {v(SM_+2)} quad_perm:[0,1,2,3] row_mask:0x3 bank_mask:0xf", f"v_mov_b32_dpp {v(P+3)}, {v(SM_+2)} quad_perm:[0,1,2,3] row_mask:0xc bank_mask:0xf"]
    for n,x in enumerate([add(SM_,SM_,SM_+2),add(SM_+1,SM_+1,SM_+3),f"v_exp_f32 {v(SM_+2)}, {v(SM_)}",f"v_exp_f32 {v(SM_+3)}, {v(SM_+1)}",cvt(SM_+2,SM_+2,SM_+3)]+pmov): S.add("sm1","V",x,off=T["MP"][n])
    S.add("sm1","W","pr",off=T["MP"][5])
    stamps()
    if st=="" and T.get("V"): print(S.summary())
    S.emit(["pr","ones","zq","vx"])
    ST(3)
    e(f"v_mfma_f32_16x16x32_bf16 {v(AK,4)}, {v(P,4)}, {v(AK+4,4)}, 0")
    SMF(e,AQ,P,v(VB0,8),1)
    e(add(AV+4,AV+4,AV+6),add(AV+5,AV+5,AV+7),cvt(VB1,AV+4,AV+5),cvt(VB1+6,AV+4,AV+5))
    e(add(AK,AK,AK+2),add(AK+1,AK+1,AK+3))
    SMF(e,AQ+4,P,v(VB1,8),1)
    def opost(sumadd):
        if sumadd: e(add(AK,AK,AK+2),add(AK+1,AK+1,AK+3))
        e(f"v_rcp_f32 {v(AK+2)}, {v(AK)}", f"v_rcp_f32 {v(AK+3)}, {v(AK+1)}")
        e(add(AQ,AQ,AQ+2),add(AQ+1,AQ+1,AQ+3),mul(AQ,AQ,AK+2),mul(AQ+1,AQ+1,AK+3),cvt(AQ+2,AQ,AQ+1))
        e(add(AQ+4,AQ+4,AQ+6),add(AQ+5,AQ+5,AQ+7),mul(AQ+4,AQ+4,AK+2),mul(AQ+5,AQ+5,AK+3),cvt(AQ+3,AQ+4,AQ+5))
        return e.lgop(f"ds_write_b64 {v(vWrKO)}, {v(AQ+2,2)} offset:{L_QO}")
    opost(False)
    e(f"v_maximum3_f32 {v(tC0)}, {v(AK)}, {v(AK+1)}, {v(AK+2)}", f"v_maximum3_f32 {v(tC0)}, {v(tC0)}, {v(AK+3)}, {v(AK+3)}")
    e(f"v_cmp_nge_f32 vcc, {s(sBound)}, {v(tC0)}")
    e(f"v_mfma_f32_32x32x1_2b_f32 {v(MF,32)}, {v(VZ)}, {v(VZ)}, 0")
    e(f"s_cbranch_vccnz {N}_sl"); e.label(N+"_slr")
    e.drain(vm=False)
    e("s_barrier")
    ST(4)
    for q in range(4): LG(f"o{q>>1}",f"ds_read_b64_tr_b16 {v(QF0+2*q,2)}, {v(vRdO)} offset:{L_QO+512*q}")()
    FL=T["FL"]; FP=T["FP"]
    fstore=f"buffer_store_dword {v(t2)}, {v(t4)}, {WSR}, 0 offen {st}"
    if FL and role==3 and T["FW"]<0: e.vmop(fstore)
    freg=[KXR+k for k in range(8)]+[P+k for k in range(4)]+[SX+k for k in range(8)]
    ft=[]
    def fpoll(k): return e.vmop(f"buffer_load_dword {v(freg[k])}, {v(t4)}, {WSR}, 0 offen sc1")
    def tile_post(t):
        b=MF+4*t; o=[add(b,b,b+2),add(b+1,b+1,b+3)]
        if t&1:
            G=AQ+4*(t>>2)+((t>>1)&1)
            o+=[cvt(G,b-4,b),cvt(G+2,b-3,b+1)]
            if t&3==1: o.append(f"v_and_or_b32 {v(G)}, {v(G)}, -2, {s(sPh)}")
        return o
    for i in range(48,64): MM(i,[f"o{i&1}"])
    wins(48,64)
    post=[]
    for j in range(16):
        if j>=3 and j%2==1: post+=tile_post((j-3)//2)
        for n in range(T["OP"][j]):
            if post: S.add(48+j,"V",post.pop(0))
        if j==11+T["STG"][role]:
            if stamp: S.add(48+j,"S",lambda: ST(5))
            S.add(48+j,"D",VM("stE",f"buffer_store_dwordx4 {v(AQ,4)}, {v(vP)}, {WSR}, {s(sPar)} offen {st}"))
    if FL and role==3 and T["FW"]>=0: S.add(48+T["FW"],"D",VM("fl",fstore))
    if FL and role<2:
        for x in FP: S.add(x,"D",lambda: ft.append(fpoll(len(ft))))
    if role<2: S.add(57,"D",LG("ra",f"ds_read_b128 {v(AV,4)}, {v(vLin)} offset:{L_RA}"))
    stamps()
    if st=="" and T.get("V"): print(S.summary())
    S.emit()
    for x in post+tile_post(7): e(x)
    ST(6)
    e.vmop(f"buffer_store_dwordx4 {v(AQ+4,4)}, {v(vP)}, {WSR}, {s(sParL)} offen {st}")
    ring=[f"s_add_u32 {s(sCur)}, {s(sNext)}, {4096*(role&1)}", f"s_add_u32 {s(sNext)}, {s(sNext)}, 0x2000", f"s_and_b32 {s(sNext)}, {s(sNext)}, {MEMR|0x7fff}", f"s_xor_b32 {s(sArmM)}, {s(sNext)}, 0x4000"]
    pre=lambda: [e.lgop(wtxt(sl,h)) for sl in range(4) for h in range(2)]
    NA=T["NA"]
    def sample(q): return [e.vmop(f"buffer_load_dwordx4 {v(MF+16*q+4*k,4)}, {v(vLin)}, {WSR}, {s(sRed)} offen offset:{1024*k} sc1") for k in range(4)]
    def chk(q):
        b=MF+16*q
        for k in range(4):
            e(f"s_waitcnt vmcnt({4*(NA-1)+3-k})")
            e(f"v_mfma_f32_16x16x32_bf16 {v(AV+4,4)}, {v(AV,4)}, {v(b+4*k,4)}, {'0' if k==0 else v(AV+4,4)}")
            if k&1: e(f"v_bitop3_b32 {v(tC0+(k>>1))}, {v(b+4*k-4)}, {v(b+4*k)}, {s(sPh)} bitop3:0x7e")
        e(f"v_bitop3_b32 {v(tC0)}, {v(tC0)}, {v(tC1)}, 1 bitop3:0xa8")
        e(f"v_cmp_ne_u32 vcc, 0, {v(tC0)}")
        e(f"v_add_f32_dpp {v(AV+6)}, {v(AV+4)}, {v(AV+4)} row_ror:8 row_mask:0xf bank_mask:0xf")
        e(f"v_add_f32_dpp {v(AV+7)}, {v(AV+5)}, {v(AV+5)} row_ror:8 row_mask:0xf bank_mask:0xf")
        e(cvt(t2,AV+6,AV+7))
    if role<2:
        if FL:
            D=T["DE"] if role==0 else T["DL"]
            pq=[wtxt(sl,h) for sl in range(4) for h in range(2)] if role==1 else []
            while len(ft)<D:
                ft.append(fpoll(len(ft)))
                n=T["FN"]
                while pq and n>=3: e.lgop(pq.pop(0)); n-=3
                e.nops(n)
            for x in pq: e.lgop(x)
            fstate=list(e.vm)
            e.wait(ft[0])
            e(f"v_cmp_ge_u32 vcc, {s(sS)}, {v(freg[0])}", f"s_cbranch_vccnz {N}_rf")
            e.label(N+"_p0")
        else:
            if role==1: pre()
            e.nops(T["D1E"] if role==0 else T["D1L"])
        ST(7)
        sample(0)
        if role==0: pre()
        if NA>1:
            e.nops(T["G1E"] if role==0 else T["G1L"])
            sample(1)
        e.wait(tk["ra"])
        chk(0)
        e(f"s_cbranch_vccnz {N}_r1")
        e.label(N+"_pub")
        ST(8)
        e.vm=[]
        pb=e.vmop(f"buffer_store_dword {v(t2)}, {v(vA)}, {WSR}, {s(sNext)} offen {st}")
        e(f"v_mfma_f32_32x32x1_2b_f32 {v(AQ,32)}, {v(VZ)}, {v(VZ)}, 0")
        step_scalars(e,role)
        e(f"s_cmp_eq_u32 {s(sS)}, {s(sEnd)}", f"s_cbranch_scc1 {N}_exit")
        e(*ring)
        e.nops(T["D2E"] if role==0 else T["D2L"])
        ST(9)
        dm=dma(e)
        if role==0:
            if NB>1:
                e.nops(T["G2"]); dma(e)
            e.drain(vm=False)
            e.wait(dm)
        else:
            e("s_waitcnt vmcnt(5) lgkmcnt(0)")
    else:
        idle_work(e)
        step_scalars(e,role)
        e(f"s_cmp_eq_u32 {s(sS)}, {s(sEnd)}", f"s_cbranch_scc1 {N}_exit")
        e(f"s_add_u32 {s(sT0)}, {s(sS)}, 1")
        if role==2:
            e(f"s_min_u32 {s(sT0)}, {s(sT0)}, 63")
            e.wait(tk["rdy"])
            e.label(N+"_rd")
            e(f"v_mad_u32_u24 {v(t3)}, {v(t3)}, {NWORK}, {v(t4)}")
            e(f"v_cmp_ge_u32 vcc, {s(sT0)}, {v(t3)}")
            e(f"s_cbranch_vccnz {N}_rr")
        else:
            e(f"v_mov_b32 {v(t2)}, {s(sT0)}")
            touch_scalars(e)
        e.drain(vm=False)
    if stamp:
        lab=e.newlabel(N+"_ns")
        e("s_waitcnt lgkmcnt(0)", f"s_cmp_lg_u32 {s(sS)}, {stamp}", f"s_cbranch_scc1 {lab}")
        for i in range(10): e(f"s_mov_b32 {s(84+i)}, {s(64+2*i)}")
        e.label(lab)
    e(f"s_branch {N}_head")
    def spin(stat=None):
        if stat is not None: e(f"s_add_u32 {s(sStat+stat)}, {s(sStat+stat)}, 1")
        e(f"s_add_u32 {s(sRetry)}, {s(sRetry)}, 1", f"s_cmp_gt_u32 {s(sRetry)}, {MAXSPIN}", f"s_cbranch_scc1 {name}_abort")
    for h in range(2):
        e.label(f"{N}_y{h}")
        e(f"s_cmp_eq_u32 {s(sS)}, {s(sFirst)}", f"s_cbranch_scc1 {N}_y{h}r")
        e.label(f"{N}_y{h}l")
        if role==h:
            dma(e); e(f"s_waitcnt vmcnt({4*(NB-1)})")
        e(ctxt(h)); [e(ftxt(4*h+k)) for k in range(4)]
        spin(2+h)
        e("s_waitcnt lgkmcnt(4)", f"v_cmp_eq_u32 vcc, {s(sSent)}, {v(tC0+h)}", f"s_cbranch_vccnz {N}_y{h}l")
        if h==0:
            for k in range(8): e(f"v_mov_b32 {v(AQ+k)}, 0")
            e("s_waitcnt lgkmcnt(3)"); SMF(e,AQ,MF,wop(0)); SMF(e,AQ+4,MF,wop(1))
        e("s_waitcnt lgkmcnt(0)", f"s_branch {N}_y{h}r")
    e.label(f"{N}_x")
    e(f"s_cmp_eq_u32 {s(sS)}, {s(sFirst)}", f"s_cbranch_scc1 {N}_xr")
    def exact():
        e(f"s_mov_b64 {s(sM,2)}, 0")
        for k in range(32): e(f"v_cmp_eq_u32 vcc, {s(sSent)}, {v(MF+k)}", f"s_or_b64 {s(sM,2)}, {s(sM,2)}, vcc")
    exact()
    e(f"s_cbranch_scc0 {N}_xr")
    e.label(f"{N}_xl")
    spin(0)
    if role<2: dma(e)
    e.drain()
    for k in range(8): e(ftxt(k))
    e.drain()
    exact()
    e(f"s_cbranch_scc1 {N}_xl")
    for k in range(16): e(f"v_mov_b32 {v(AQ+k)}, 0")
    for sl in range(CK+3):
        m,t,ks=ORDER[sl]
        if sl in WIN: e("s_nop 3", wtxt(sl,0), wtxt(sl,1), "s_waitcnt lgkmcnt(0)")
        SMF(e,{"Q":AQ,"K":AK}[m]+4*t,MF+4*ks,wop(sl))
    e(*(qpost(0)+qpost(1)))
    for sl,(b,iss) in WIN.items():
        if iss and sl>CK+2:
            for h in range(2):
                if iss[h]<CK+2: e(wtxt(sl,h))
    e.drain()
    e(f"s_branch {N}_xr")
    if role<2 and FL:
        e.label(N+"_rf")
        e.vm=fstate[fstate.index(ft[0])+1:]
        for k in range(1,D):
            fpoll(k-1); e(f"s_add_u32 {s(sStat)}, {s(sStat)}, 1")
            e.wait(ft[k]); e(f"v_cmp_ge_u32 vcc, {s(sS)}, {v(freg[k])}", f"s_cbranch_vccz {N}_p0")
        e.label(N+"_rg")
        for k in range(D):
            fpoll((k+D-1)%D); e(f"s_add_u32 {s(sStat)}, {s(sStat)}, 1")
            e(f"s_waitcnt vmcnt({D-1})", f"v_cmp_ge_u32 vcc, {s(sS)}, {v(freg[k])}", f"s_cbranch_vccz {N}_p0")
        spin(); e(f"s_branch {N}_rg")
    if role<2:
        e.label(N+"_r1")
        for q in range(NA):
            sample(q); e(f"s_add_u32 {s(sStat+1)}, {s(sStat+1)}, 1")
            chk((q+1)%NA)
            e(f"s_cbranch_vccz {N}_pub")
        spin(); e(f"s_branch {N}_r1")
    elif role==2:
        e.label(N+"_rr")
        e("s_sleep 8")
        e(f"buffer_load_dword {v(t3)}, {v(vB)}, {WSR}, 0 offen sc1")
        spin(); e.drain(); e(f"s_branch {N}_rd")
    e.label(N+"_sl")
    e.forget()
    e(f"v_max3_f32 {v(tC0)}, {v(SX)}, {v(SX+1)}, {v(SM_)}", f"v_max_f32 {v(tC0)}, {v(tC0)}, {v(SM_+1)}")
    e(f"v_lshrrev_b32 {v(AK+1)}, 2, {v(vLin)}")
    e(f"ds_write_b32 {v(AK+1)}, {v(tC0)} offset:{1024+256*role}")
    e(f"v_and_b32 {v(AK+1)}, 63, {v(AK+1)}")
    e.drain(vm=False); e("s_barrier")
    for k in range(16):
        e(f"ds_read_b32 {v(AK)}, {v(AK+1)} offset:{1024+64*k}", "s_waitcnt lgkmcnt(0)", f"v_max_f32 {v(tC0)}, {v(tC0)}, {v(AK)}")
    for b in (SX,SM_):
        e(f"v_sub_f32 {v(b+2)}, {v(b)}, {v(tC0)}", f"v_sub_f32 {v(b+3)}, {v(b+1)}, {v(tC0)}", f"v_exp_f32 {v(b+2)}, {v(b+2)}", f"v_exp_f32 {v(b+3)}, {v(b+3)}")
    e(cvt(SX+2,SX+2,SX+3), f"ds_write_b32 {v(vWrP)}, {v(SX+2)} offset:{L_PX}")
    e(cvt(SM_+2,SM_+2,SM_+3))
    for k in range(8): e(f"v_mov_b32 {v(AQ+k)}, 0")
    e.drain(vm=False); e("s_barrier")
    e(f"ds_read_b128 {v(P,4)}, {v(vLin)} offset:{L_PX}")
    e.drain(vm=False)
    e(*pmov)
    e(f"v_mfma_f32_16x16x32_bf16 {v(AK,4)}, {v(P,4)}, {v(AK+4,4)}, 0")
    SMF(e,AQ,P,v(VB0,8),1); SMF(e,AQ+4,P,v(VB1,8),1)
    opost(True)
    e(f"s_branch {N}_slr")
    e.label(N+"_exit")
    if role<2: e(f"buffer_store_dword {v(t2)}, {v(vA)}, {WSR}, {s(sKm)} offen sc1")
    e(f"s_branch {name}_done")

TUNE=dict(B2=3,QP=[[13,14,15,16,17,19],[17,18,19,20,21,23]],CK=22,QB=26,QR=[0,0,1,1,2,2,3,3],SX=32,KP=[2,2,3],ZQ=[30,34],XP=[2,2,3,4,5],
          KB=37,PB=42,ON=39,SM=41,VP=[2,3,4,5],MP=[2,2,3,4,5,6,6],
          KV=[[8,10,13,17],[9,12,14,17],[8,10,13,16],[9,11,14,16]],HS=[21,21,25,25,21],TC=[18,21],
          OP=[0,0,0,1,1,2,2,2,1,2,2,1,1,2,2,2],FL=1,FW=-1,FP=[51,54,57,60,63],DE=8,DL=11,FN=9,NA=1,NB2=2,D1E=8,D1L=16,G1E=8,G1L=28,D2E=48,D2L=48,G2=28,STG=[0,2,1,3],WF="")

def chain(e, name, ptrs, sMem0, sDbg, sXcc, T=TUNE, stamp=None, modes=("","sc1"), timing=False, zero_flags=False):
    e(f"v_mov_b32 {v(TID)}, v0", f"v_lshrrev_b32 {v(X)}, 6, v0", f"v_readfirstlane_b32 {s(sW)}, {v(X)}")
    dma_addr(e,P,P+2,None)
    order=REG_CHUNKS+LDS_CHUNKS
    def dest(n,tau,ridx):
        m,ks,tp=order[n]; k,r=LOC[slot_of(m,2*tp+tau,ks)]
        return a(r+2*ridx,2) if k=="a" else v(r+2*ridx,2) if k=="v" else v(MF+16*(n&1)+8*tau+2*ridx,2)
    SG=Stager(e,order,dest,ptrs,P,P+2,KXR,9,L_W,WREG,T["WF"])
    prologue_addr(e,name)
    e(f"s_mov_b32 {s(sSent)}, {SENT}", f"s_mov_b32 {s(sC)}, {f2u(128**-0.5*math.log2(math.e))}", f"s_mov_b32 {s(sBound)}, {f2u(2.0**24)}")
    e(f"s_mov_b32 {s(sRetry)}, 0", f"s_mov_b32 {s(sS)}, 0", f"s_mov_b32 {s(sFirst)}, 0", f"s_mov_b32 {s(sEnd)}, 63", f"s_mov_b32 {s(sPh)}, 0")
    for k in range(4): e(f"s_mov_b32 {s(sStat+k)}, 0")
    e(f"s_mov_b32 {s(sPar)}, {PART}", f"s_mov_b32 {s(sParL)}, {PART+4096}")
    e(f"s_lshl_b32 {s(sT0)}, {s(sH)}, 13", f"s_and_b32 {s(sT1)}, {s(sW)}, 1", f"s_lshl_b32 {s(sT1)}, {s(sT1)}, 12", f"s_add_u32 {s(sRed)}, {s(sT0)}, {s(sT1)}")
    e(f"s_lshl_b32 {s(sT3)}, {s(sW)}, 11", f"s_add_u32 {s(sT3)}, {s(sT3)}, {s(sT0)}")
    e(f"s_mov_b32 {s(sCur)}, {MEMR}", f"s_mov_b32 {s(sNext)}, {MEMR+0x2000}", f"s_mov_b32 {s(sArmM)}, {MEMR+0x6000}")
    e(f"s_add_u32 {s(sKx)}, {s(sT3)}, {KX}", f"s_add_u32 {s(sVx)}, {s(sT3)}, {VT}", f"s_mov_b32 {s(sKm)}, {MEMH}")
    e(f"s_mov_b32 {s(sWT)}, {s(sMem0)}", f"s_mov_b32 {s(sWT+1)}, {s(sMem0+1)}", f"s_mov_b32 {s(sWT+2)}, 8192", f"s_mov_b32 {s(sWT+3)}, 0x20000")
    small=[]
    for f in range(2):
        for el in range(8):
            small.append(e.vmop(f"buffer_load_ushort {v(AQ+8*f+el)}, {v(tC0)}, {s(sWT,4)}, 0 offen offset:{64*f+256*((el>>1)&1)+32*(el&1)+2*(el>>2)}"))
    for k in range(4): e(f"v_mov_b32 {v(W0+k)}, {s(sSent)}")
    for q in range(2):
        e(f"s_add_u32 {s(sT0)}, {s(sT3)}, {0x40000*q}")
        for k in range(2): small.append(e.vmop(f"buffer_store_dwordx4 {v(W0,4)}, {v(vLin)}, {WSR}, {s(sT0)} offen offset:{1024*k} sc1"))
    e(f"s_lshl_b32 {s(sT0)}, {s(sT3)}, 1", f"s_add_u32 {s(sT0)}, {s(sT0)}, {MEMH}")
    for k in range(4): small.append(e.vmop(f"buffer_store_dwordx4 {v(W0,4)}, {v(vLin)}, {WSR}, {s(sT0)} offen offset:{1024*k} sc1"))
    e(f"s_lshr_b32 {s(sT0)}, {s(sT3)}, 3", f"s_add_u32 {s(sT0)}, {s(sT0)}, {MEMR}", f"v_lshrrev_b32 {v(t2)}, 2, {v(vLin)}")
    small.append(e.vmop(f"buffer_store_dword {v(W0)}, {v(t2)}, {WSR}, {s(sT0)} offen sc1"))
    small.append(e.vmop(f"buffer_store_dword {v(VZ)}, {v(SX+1)}, {WSR}, 0 offen sc1"))
    if zero_flags:
        e(f"s_lshl_b32 {s(sT0)}, {s(sH)}, 8", f"s_add_u32 {s(sT0)}, {s(sT0)}, {OFLG}")
        small.append(e.vmop(f"buffer_store_dword {v(VZ)}, {v(t2)}, {WSR}, {s(sT0)} offen sc1"))
        e(f"s_lshl_b32 {s(sT0)}, {s(sH)}, 7", f"s_add_u32 {s(sT0)}, {s(sT0)}, {KVRDY}", f"v_and_b32 {v(t3)}, 127, {v(t2)}")
        small.append(e.vmop(f"buffer_store_dword {v(VZ)}, {v(t3)}, {WSR}, {s(sT0)} offen sc1"))
    SG.start()
    tr_addr(e,KXR,L_W,WREG)
    e(f"s_lshl_b32 {s(sT0)}, {s(sW)}, 11", f"v_add_u32 {v(t2)}, {s(sT0)}, {v(vLin)}")
    e.wait(small)
    e(f"v_mov_b32 {v(tC1)}, {SENT|0x00400040}")
    for q in range(8): e(f"v_lshl_or_b32 {v(W1+q)}, {v(AQ+2*q+1)}, 16, {v(AQ+2*q)}", f"v_cmp_eq_u32 vcc, {s(sSent)}, {v(W1+q)}", f"v_cndmask_b32 {v(W1+q)}, {v(W1+q)}, {v(tC1)}, vcc")
    for f in range(2): e.lgop(f"ds_write_b128 {v(t2)}, {v(W1+4*f,4)} offset:{L_MEM+1024*f}")
    e.drain(vm=False)
    e("s_barrier")
    e(f"s_lshl_b32 {s(sT0)}, {s(sH)}, 2", f"s_add_u32 {s(sT0)}, {s(sT0)}, 128", f"v_mov_b32 {v(t3)}, {s(sT0)}", f"s_add_u32 {s(sT1)}, {s(sXcc)}, 1", f"v_mov_b32 {v(t4)}, {s(sT1)}")
    e.vmop(f"global_store_dword {v(t3)}, {v(t4)}, {s(sDbg,2)} sc1")
    def convert(n):
        if n>=len(REG_CHUNKS):
            for q in range(4): e.lgop(f"ds_write_b128 {v(vW)}, {v(MF+16*(n&1)+4*q,4)} offset:{(n%9)*4096+q*1024}")
    SG.finish(convert)
    e(f"v_lshrrev_b32 {v(t3)}, 2, {v(vLin)}", f"v_and_b32 {v(t3)}, 127, {v(t3)}", f"v_add_u32 {v(t3)}, 128, {v(t3)}")
    e.label(name+"_tw")
    e(f"global_load_dword {v(t2)}, {v(t3)}, {s(sDbg,2)} sc1")
    e(f"s_add_u32 {s(sRetry)}, {s(sRetry)}, 1", f"s_cmp_gt_u32 {s(sRetry)}, {MAXSPIN}", f"s_cbranch_scc1 {name}_abort")
    e.drain()
    e(f"v_cmp_eq_u32 vcc, 0, {v(t2)}", f"s_cbranch_vccnz {name}_tw")
    e(f"v_cmp_ne_u32 {s(sM,2)}, {v(t4)}, {v(t2)}")
    lab=e.newlabel(name+"_c"); lab3=e.newlabel(name+"_d"); lab4=e.newlabel(name+"_e")
    e(f"s_cmp_lg_u32 {s(sW)}, 2", f"s_cbranch_scc1 {lab}")
    e(f"v_bfe_u32 {v(t4)}, {v(vB)}, 2, 3")
    e.label(name+"_rw")
    e(f"buffer_load_dword {v(t3)}, {v(vB)}, {WSR}, 0 offen sc1")
    e(f"s_add_u32 {s(sRetry)}, {s(sRetry)}, 1", f"s_cmp_gt_u32 {s(sRetry)}, {MAXSPIN}", f"s_cbranch_scc1 {name}_abort")
    e.drain()
    e(f"v_mad_u32_u24 {v(t3)}, {v(t3)}, {NWORK}, {v(t4)}", f"v_cmp_ge_u32 vcc, 1, {v(t3)}", f"s_cbranch_vccnz {name}_rw")
    e.label(lab)
    e(f"s_and_b32 {s(sT0)}, {s(sW)}, 1", f"s_lshl_b32 {s(sT0)}, {s(sT0)}, 12", f"s_add_u32 m0, {s(sT0)}, {L_MEM}")
    e(f"s_cmp_lg_u32 {s(sW)}, 3", f"s_cbranch_scc1 {lab3}")
    e(f"s_mov_b32 {s(sT0)}, 1", f"v_mov_b32 {v(t2)}, 1", f"v_mov_b32 {v(t4)}, {v(SX+1)}")
    touch_scalars(e)
    e.label(lab3)
    e(f"s_cmp_ge_u32 {s(sW)}, 2", f"s_cbranch_scc1 {lab4}")
    e(f"v_and_b32 {v(t3)}, 0x1fff, {v(vA)}", f"ds_read_b32 {v(t2)}, {v(t3)} offset:{L_MEM}", f"v_mov_b32 {v(t3)}, {s(sSent)}", f"v_mov_b32 {v(t4)}, {v(SX)}")
    e.label(lab4)
    idle_work(e)
    e.drain()
    if timing: e("s_memtime s[60:61]", "s_memrealtime s[56:57]", "s_waitcnt lgkmcnt(0)")
    if len(modes)>1: e(f"s_cmp_lg_u64 {s(sM,2)}, 0", f"s_cbranch_scc1 {name}_m1")
    for mi,st in enumerate(modes):
        nm=f"{name}_m{mi}"
        e.label(nm)
        for r in (1,2,3): e(f"s_cmp_eq_u32 {s(sW)}, {r}", f"s_cbranch_scc1 {nm}_r{r}_entry")
        e(f"s_branch {nm}_r0_entry")
        for r in range(4): loop(e,nm,r,st,T,stamp)
        e.label(nm+"_abort"); e(f"s_branch {name}_abort")
        e.label(nm+"_done"); e(f"s_branch {name}_done")
```

```python
import re
class Tok:
    __slots__=("s",)
    def __init__(s_, s): s_.s=s
class E:
    def __init__(self):
        self.L=[]; self.vm=[]; self.lg=[]; self.uid=0
    def __call__(self, s, *more):
        self.L.append(s)
        for m in more: self.L.append(m)
    def vmop(self, s):
        t=Tok(s); self.vm.append(t); self.L.append(s); return t
    def lgop(self, s):
        t=Tok(s); self.lg.append(t); self.L.append(s); return t
    def wait(self, *toks):
        flat=[]
        def fl(x):
            if x is None: return
            if isinstance(x,(list,tuple)):
                for y in x: fl(y)
            else: flat.append(x)
        fl(toks)
        iv=max([self.vm.index(t) for t in flat if t in self.vm], default=-1)
        il=max([self.lg.index(t) for t in flat if t in self.lg], default=-1)
        parts=[]
        if iv>=0:
            n=min(len(self.vm)-1-iv,63); parts.append(f"vmcnt({n})"); self.vm=self.vm[len(self.vm)-n:] if n else []
        if il>=0:
            n=min(len(self.lg)-1-il,15); parts.append(f"lgkmcnt({n})"); self.lg=self.lg[len(self.lg)-n:] if n else []
        if parts:
            self.L.append("s_waitcnt "+" ".join(parts)); return True
        return False
    def drain(self, vm=True, lg=True):
        p=[]
        if vm: p.append("vmcnt(0)"); self.vm=[]
        if lg: p.append("lgkmcnt(0)"); self.lg=[]
        self.L.append("s_waitcnt "+" ".join(p))
    def forget(self):
        self.vm=[]; self.lg=[]
    def label(self, n): self.L.append(n+":")
    def newlabel(self, base):
        self.uid+=1; return f"{base}_{self.uid}"
    def nops(self, states):
        while states>0:
            k=min(states,16); self.L.append(f"s_nop {k-1}"); states-=k
    def text(self): return "\n".join(self.L)+"\n"

def v(a,n=1): return f"v{a}" if n==1 else f"v[{a}:{a+n-1}]"
def a(x,n=1): return f"a{x}" if n==1 else f"a[{x}:{x+n-1}]"
def s(x,n=1): return f"s{x}" if n==1 else f"s[{x}:{x+n-1}]"

_reg=re.compile(r"^(-|\|)?(abs\()?([vas])(\d+|\[(\d+):(\d+)\])\)?\|?$")
def regs(op):
    op=op.strip()
    if op in ("vcc","vcc_lo","vcc_hi"): return {("s",106),("s",107)}
    if op=="m0": return {("s",124)}
    if op in ("exec","exec_lo","exec_hi"): return {("s",126),("s",127)}
    m=_reg.match(op)
    if not m: return set()
    k=m.group(3)
    if m.group(5): return {(k,i) for i in range(int(m.group(5)),int(m.group(6))+1)}
    return {(k,int(m.group(4)))}
TRANS=("v_exp_","v_log_","v_rcp_","v_rsq_","v_sqrt_","v_sin_","v_cos_")
def parse(line):
    line=line.split(";")[0].strip()
    if not line or line.endswith(":") or line.startswith("."): return None
    sp=line.split(None,1); op=sp[0]; rest=sp[1] if len(sp)>1 else ""
    ops=[x.strip() for x in rest.split(",")]
    if ops:
        last=ops[-1].split();
        mods=last[1:] if last else []
        ops[-1]=last[0] if last else ""
    else: mods=[]
    d=dict(op=op,ops=ops,mods=mods,w=set(),r=set(),kind="other",states=1,line=line)
    R=[regs(o) for o in ops]
    if op=="s_nop": d["states"]=int(ops[0],0)+1; d["kind"]="nop"
    elif op.startswith("v_mfma") or op.startswith("v_smfmac"):
        d["kind"]="mfma"; d["w"]=R[0]; d["ab"]=R[1]|R[2]
        if op.startswith("v_smfmac"): d["c"]=R[0]; d["ab"]|=R[3]
        else: d["c"]=R[3]
        d["r"]=d["ab"]|d["c"]
        d["sgemm"]=op.endswith("_f32") and "bf16" not in op and "f16" not in op
        if "32x32x1_2b" in op or "32x32x2_f32" in op: d["p"]=16
        elif "32x32" in op: d["p"]=8
        elif "16x16x4_f32" in op or "16x16x1_4b" in op: d["p"]=8
        elif "4x4" in op: d["p"]=2
        else: d["p"]=4
    elif op.startswith("v_"):
        d["kind"]="valu"; d["trans"]=op.startswith(TRANS)
        d["dpp"]=("_dpp" in op) or any(m.startswith(("row_","quad_perm")) for m in mods)
        d["w"]=set(R[0]); d["r"]=set().union(*R[1:]) if len(R)>1 else set()
        if op.startswith("v_permlane"): d["w"]=R[0]|R[1]; d["r"]=R[0]|R[1]; d["perm"]=True
        if op.startswith(("v_fmac","v_mac")) or d["dpp"]: d["r"]|=R[0]
        if op.startswith(("v_add_co","v_addc_co","v_sub_co","v_subb_co")): d["w"]|=R[1]; d["r"]=set().union(*R[2:])
        if op.startswith("v_cmpx"): d["w"]|=regs("exec")
        if op.startswith(("v_readfirstlane","v_readlane")): d["rl"]=True
    elif op.startswith("ds_"):
        d["kind"]="ds"
        if op.startswith(("ds_read","ds_bpermute","ds_swizzle","ds_permute")): d["w"]=R[0]; d["r"]=set().union(*R[1:])
        else: d["r"]=set().union(*R)
    elif op.startswith(("buffer_","global_")):
        d["kind"]="vmem"
        lds=("lds" in mods) or ("_lds_" in op)
        d["lds"]=lds
        if "load" in op and not lds: d["w"]=R[0]; d["r"]=set().union(*R[1:])
        elif "atomic" in op and "sc0" in mods:
            d["w"]=R[0]; d["r"]=set().union(*R)
        else: d["r"]=set().union(*R) if R else set()
        if "store" in op and ("x4" in op or "x3" in op):
            d["wide"]=R[0] if op.startswith("buffer_") else R[1]
    elif op.startswith("s_"):
        d["kind"]="salu"
        if not op.startswith(("s_cmp","s_cbranch","s_branch","s_waitcnt","s_barrier","s_endpgm","s_sleep","s_setprio","s_bitcmp")) and R:
            d["w"]=R[0]; d["r"]=set().union(*R[1:]) if len(R)>1 else set()
    return d
def isv(x): return x[0] in "va"
def check(lines, verbose=True, fix=False):
    hist=[]; errs=[]; out=[]
    now=0; pipe=0
    for n,line in enumerate(lines):
        d=parse(line)
        if d is None:
            out.append(line); continue
        if d["op"] in ("s_branch","s_endpgm","s_setpc_b64"):
            hist=[]; out.append(line); continue
        short=0
        dist=0
        for idx in range(len(hist)-1,-1,-1):
            p=hist[idx]
            need=0; why=""
            pw=p["w"]; have=dist
            if p["kind"]=="valu":
                vw={x for x in pw if isv(x)}; sw={x for x in pw if x[0]=="s"}
                if d["kind"]=="mfma" and vw&d["r"]: need,why=2,"valu->mfma"
                if d["kind"]=="valu":
                    if p.get("trans") and not d.get("trans") and vw&d["r"]: need,why=max(need,1),"trans->valu"
                    if (d.get("dpp") or d.get("perm")) and vw&d["r"]: need,why=max(need,2),"valu->dpp/perm"
                    if d.get("rl") and vw&d["r"]: need,why=max(need,1),"valu->readlane"
                    rs=set(d["r"])
                    if d["op"].startswith(("v_cndmask","v_addc","v_subb")) and len(d["ops"])<=3+(1 if d["op"].startswith("v_cndmask") else 2): rs|=regs("vcc") if "vcc" in d["line"] else set()
                    if sw&rs: need,why=max(need,2),"valu sgpr->valu"
                if d["kind"]=="vmem" and sw&d["r"]: need,why=max(need,5),"valu sgpr->vmem"
                if p.get("trans") and d["kind"] in ("ds","vmem","mfma") and vw&d["r"]: need,why=max(need,1),"trans->use"
            if p["kind"]=="mfma":
                P=p["p"]; sg=p["sgemm"]
                full={2:5,4:8,8:12,16:20}[P] if not sg else {2:4,4:6,8:10,16:18}[P]
                if d["kind"] in ("valu","ds","vmem") and pw&(d["r"]|d["w"]): need,why=full,"mfma D->valu/mem"
                if d["kind"]=="mfma":
                    if pw&d["ab"]: need,why=full,"mfma D->A/B"
                    elif pw&d["c"]:
                        if sg and not d["sgemm"]: pass
                        elif pw==d["c"] and P==d["p"] and sg==d["sgemm"]: need=2 if P==2 else 0
                        else: need,why=({2:4,4:6,8:10,16:18}[P] if not sg else {2:2,4:4,8:8,16:16}[P]),"mfma D->C overlap"
                    elif pw&d["w"]:
                        if not (sg and not d["sgemm"]): need,why={2:4,4:6,8:10,16:18}[P],"mfma D WAW"
                if d["kind"]=="valu" and not sg and p["c"]&d["w"]:
                    x={2:1,4:3,8:7,16:15}[P]
                    if x>need: need,why=x,"mfma C WAR"
            if p["kind"]=="vmem" and p.get("wide") and p["wide"]&d["w"] and d["kind"] in("valu","mfma"): need,why=max(need,2),"store data WAR"
            if p["kind"]=="salu" and ("s",124) in pw and d["kind"]=="vmem" and d.get("lds"): need,why=max(need,1),"m0->dma"
            if p["kind"]=="mfma" and need>0 and why!="mfma C WAR":
                t=0; pp=p["p"]; tt=1
                for q in hist[idx+1:]+[d]:
                    if q["kind"]=="mfma":
                        tt=max(tt,pp); pp=tt+q["p"]
                    t=tt; tt+=q["states"]
                have=t-1
            if need>have:
                errs.append((n,why,need,have,p["line"],d["line"])); short=max(short,need-have)
            dist+=p["states"]
            if dist>=24: break
        if fix and short:
            l=f"s_nop {short-1}"; out.append(l); hist.append(parse(l))
        out.append(line)
        hist.append(d)
        if len(hist)>40: hist=hist[-40:]
    if fix:
        if errs: return check(out,verbose,True)
        return out
    if verbose:
        for e in errs: print("HAZARD line %d %s need %d have %d:\n    %s\n    %s"%e)
    return errs

def lin(e, dst, src, terms, const=0, tmp=None, stmp=None, base=None):
    first=True
    def acc(): return v(dst)
    for (pos,width,coef) in terms:
        p2 = coef>0 and (coef&(coef-1))==0
        sh = coef.bit_length()-1
        if first:
            e(f"v_bfe_u32 {v(dst)}, {v(src)}, {pos}, {width}")
            if coef!=1:
                if p2: e(f"v_lshlrev_b32 {v(dst)}, {sh}, {v(dst)}")
                else: e(f"v_mul_u32_u24 {v(dst)}, {coef}, {v(dst)}")
            first=False
        else:
            e(f"v_bfe_u32 {v(tmp)}, {v(src)}, {pos}, {width}")
            if p2: e(f"v_lshl_add_u32 {v(dst)}, {v(tmp)}, {sh}, {v(dst)}")
            else: e(f"v_mul_u32_u24 {v(tmp)}, {coef}, {v(tmp)}", f"v_add_u32 {v(dst)}, {v(tmp)}, {v(dst)}")
    if first:
        e(f"v_mov_b32 {v(dst)}, {const}"); const=0
    if const: e(f"v_add_u32 {v(dst)}, {const}, {v(dst)}")
    if base is not None: e(f"v_add_u32 {v(dst)}, {base}, {v(dst)}")

class Sched:
    def __init__(self,e): self.e=e; self.slots=[]; self.tk={}
    def mm(self,key,fn,need=()):
        self.slots.append(dict(key=key,fn=fn,need=list(need),W=[],S=[],D=[],V=[])); return self.slots[-1]
    def idx(self,key): return [k for k,x in enumerate(self.slots) if x["key"]==key][0]
    def find(self,key,off=0): return self.slots[min(self.idx(key)+off,len(self.slots)-1)]
    def add(self,key,kind,item,off=0): self.find(key,off)[kind].append(item)
    def toks(self,names): return [self.tk[n] for n in names]
    def LG(self,name,txt):
        def f(): self.tk.setdefault(name,[]).append(self.e.lgop(txt))
        return f
    def VM(self,name,txt):
        def f(): self.tk.setdefault(name,[]).append(self.e.vmop(txt))
        return f
    def summary(self):
        return " ".join(f"{x['key']}:"+("W" if x['W'] else "")+"S"*len([y for y in x['S'] if not (isinstance(y,str) and y.endswith(':'))])+"D"*len(x['D'])+"V"*len(x['V']) for x in self.slots)
    def emit(self,tail_need=()):
        e=self.e
        e.wait(self.toks(self.slots[0]["need"]))
        for i,sl in enumerate(self.slots):
            sl["fn"]()
            nxt=self.slots[i+1]["need"] if i+1<len(self.slots) else list(tail_need)
            e.wait(self.toks(list(nxt)+sl["W"]))
            for x in sl["S"]+sl["D"]+sl["V"]:
                if callable(x): x()
                else: e(x)
        self.slots=[]
```

```python
PART=0x000000
MEMR=0x100000
FLAG=0x110000
KVRDY=0x112000
OFLG=0x114000
DBGT=0x120000
MEMH=0x180000
KX=0x1000000
VT=0x2000000
QX=0x3000000
OB=0x5000000
X1T=0x6000000
YB=0x6400000
YBS=33024
WS_BYTES=0x10000000
SENT=0x7FA57FA5
OOB=0x7ff00000
NWORK=7
pAX,pWR,pWI,pBX,pM0,pWQ,pWK,pWV,pWO=64,66,68,70,72,74,76,78,80
pOUT,pDBG=4,6
D_GA,D_COL=36,40
```

```python
from emit import *
from layout import *
from chain import f2u, Stager, dma_addr, tr_addr, SMF as _SMF, MAXSPIN, sWS, sWT, sH, sW, sT0, sT1, sT2, sT3, sRetry, WSR, TID, X, Y, Z, add, mul, cvt
import chain as C
import math
sI=18; sSeg=19; sCnt=20; sA=21; sB=22; sD=23; sE=24; sF=25; sG=26; sSent=27; sM=38
vTid=255
def get_tid(e, dst):
    e(f"v_mbcnt_lo_u32_b32 {v(dst)}, -1, 0", f"v_mbcnt_hi_u32_b32 {v(dst)}, -1, {v(dst)}", f"s_lshl_b32 {s(sT0)}, {s(sW)}, 6", f"v_add_u32 {v(dst)}, {s(sT0)}, {v(dst)}")
def spin(e, abort): e(f"s_add_u32 {s(sRetry)}, {s(sRetry)}, 1", f"s_cmp_gt_u32 {s(sRetry)}, {MAXSPIN}", f"s_cbranch_scc1 {abort}")
def srd(e, p, nbytes): e(f"s_mov_b32 {s(sWT)}, {s(p)}", f"s_mov_b32 {s(sWT+1)}, {s(p+1)}", f"s_mov_b32 {s(sWT+2)}, {nbytes}", f"s_mov_b32 {s(sWT+3)}, 0x20000")
WTR=s(sWT,4)
def M32(e,d,A,B,first): e(f"v_mfma_f32_32x32x16_bf16 {d}, {A}, {B}, {'0' if first else d}")
def M16(e,d,A,B,first): e(f"v_mfma_f32_16x16x32_bf16 {d}, {A}, {B}, {'0' if first else d}")
def wait_team(e, name, abort, ta, tb):
    l=e.newlabel(name+"_wt")
    e(f"v_mbcnt_lo_u32_b32 {v(ta)}, -1, 0", f"v_mbcnt_hi_u32_b32 {v(ta)}, -1, {v(ta)}", f"v_and_b32 {v(ta)}, 31, {v(ta)}", f"v_lshl_add_u32 {v(ta)}, {v(ta)}, 2, 64", f"v_add_u32 {v(ta)}, 64, {v(ta)}")
    e.label(l)
    e(f"global_load_dword {v(tb)}, {v(ta)}, {s(pDBG,2)} sc1"); spin(e,abort); e.drain(lg=False)
    e(f"v_cmp_eq_u32 vcc, 0, {v(tb)}", f"s_cbranch_vccnz {l}")
def wait_counter(e, name, abort, off, n, ta, tb):
    l=e.newlabel(name+"_wc"); l2=e.newlabel(name+"_wd")
    e(f"v_mov_b32 {v(ta)}, {off}")
    e.label(l)
    e(f"global_load_dword {v(tb)}, {v(ta)}, {s(pDBG,2)} sc1"); spin(e,abort); e.drain(lg=False)
    e(f"v_cmp_gt_u32 vcc, {n}, {v(tb)}", f"s_cbranch_vccz {l2}", "s_sleep 16", f"s_branch {l}")
    e.label(l2)
def bump_counter(e, off, ta, tb):
    e(f"v_mov_b32 {v(ta)}, {off}", f"v_mov_b32 {v(tb)}, 1", f"s_mov_b64 exec, 1")
    e.vmop(f"global_atomic_add {v(ta)}, {v(tb)}, {s(pDBG,2)}")
    e("s_mov_b64 exec, -1")

XS=1040
XB=32*XS
def qkv(e, name, abort):
    L_X=0; L_E=2*XB
    L_ST=16384; SREG=36864
    aD,aT=0,2
    vXs,vXr,vEw,vEv,vEr,vGs,vF=10,11,12,13,14,15,16
    ACC=64; XF=32
    get_tid(e,TID)
    e(f"v_bfe_u32 {v(X)}, {v(TID)}, 1, 3", f"v_bfe_u32 {v(Y)}, {v(TID)}, 4, 2", f"v_xor_b32 {v(X)}, {v(X)}, {v(Y)}", f"v_lshlrev_b32 {v(X)}, 5, {v(X)}")
    e(f"v_and_b32 {v(Y)}, 1, {v(TID)}", f"v_lshl_add_u32 {v(Z)}, {v(Y)}, 4, {v(X)}", f"s_lshl_b32 {s(sT0)}, {s(sH)}, 8")
    lin(e,aD,TID,[(4,2,1<<13),(6,2,16<<13)],tmp=X,base=s(sT0))
    e(f"v_add_u32 {v(aD)}, {v(aD)}, {v(Z)}", f"v_xor_b32 {v(aD+1)}, 128, {v(aD)}")
    order=[(m,n) for m in "KVQ" for n in range(8)]
    ptr=dict(Q=pWQ,K=pWK,V=pWV); toks={}; cur=[None]
    e(f"s_mul_i32 {s(sT2)}, {s(sW)}, {SREG}", f"s_add_u32 {s(sT2)}, {s(sT2)}, {L_ST}", f"s_mov_b32 {s(sWT+2)}, 0x400000", f"s_mov_b32 {s(sWT+3)}, 0x20000")
    def issue(n):
        m,c=order[n]
        if cur[0]!=m: e(f"s_mov_b32 {s(sWT)}, {s(ptr[m])}", f"s_mov_b32 {s(sWT+1)}, {s(ptr[m]+1)}"); cur[0]=m
        tk=[]
        for gb in range(4):
            e(f"s_add_u32 m0, {s(sT2)}, {(n%9)*4096+gb*1024}", f"s_mov_b32 {s(sT0)}, {(64*c+4*gb)*8192}")
            tk.append(e.vmop(f"buffer_load_dwordx4 {v(aD+(gb&1))}, {WTR}, {s(sT0)} offen lds"))
        toks[n]=tk
    for n in range(9): issue(n)
    for which,base in (("QK",aT),("V",aT+4)):
        if which=="V":
            lin(e,Z,TID,[(6,2,2),(4,1,1)],tmp=X); lin(e,Y,TID,[(5,1,2048),(2,2,256),(0,2,8)],tmp=X)
        else:
            lin(e,Z,TID,[(7,1,4),(6,1,1),(1,1,2)],tmp=X); lin(e,Y,TID,[(5,1,2048),(2,2,256),(0,1,16),(4,1,8)],tmp=X)
        e(f"v_bfe_u32 {v(X)}, {v(TID)}, 2, 2", f"v_xor_b32 {v(Z)}, {v(Z)}, {v(X)}", f"v_lshl_add_u32 {v(Y)}, {v(Z)}, 5, {v(Y)}")
        e(f"v_add_u32 {v(base)}, {L_ST}, {v(Y)}", f"v_xor_b32 {v(base+1)}, 128, {v(base)}", f"v_add_u32 {v(base+1)}, 1024, {v(base+1)}")
    lin(e,vXs,TID,[(0,6,16)])
    lin(e,vXr,TID,[(0,5,XS),(5,1,16)],tmp=X)
    lin(e,Z,TID,[(2,1,16),(3,2,4),(0,2,1)],tmp=X)
    lin(e,Y,TID,[(6,2,4),(5,1,2)],tmp=X)
    e(f"v_and_b32 {v(X)}, 7, {v(TID)}", f"v_xor_b32 {v(Y)}, {v(Y)}, {v(X)}", f"v_lshlrev_b32 {v(Y)}, 4, {v(Y)}")
    lin(e,vEw,TID,[(0,5,256)],L_E); e(f"v_add_u32 {v(vEw)}, {v(vEw)}, {v(Y)}")
    lin(e,Y,TID,[(5,1,2)]); e(f"v_bfe_u32 {v(X)}, {v(TID)}, 1, 2", f"v_xor_b32 {v(Y)}, {v(Y)}, {v(X)}", f"v_lshlrev_b32 {v(Y)}, 4, {v(Y)}")
    lin(e,vEv,TID,[(0,5,64),(6,2,2048)],L_E+16384,tmp=X); e(f"v_add_u32 {v(vEv)}, {v(vEv)}, {v(Y)}")
    lin(e,vEr,TID,[(0,8,16)],L_E)
    e(f"v_bfe_u32 {v(X)}, {v(TID)}, 4, 3", f"v_and_b32 {v(Y)}, 15, {v(TID)}", f"v_xor_b32 {v(Y)}, {v(Y)}, {v(X)}")
    lin(e,vGs,TID,[(6,1,16*256),(7,1,4*256),(4,2,256)],tmp=X); e(f"v_lshl_add_u32 {v(vGs)}, {v(Y)}, 4, {v(vGs)}")
    e(f"v_bfe_u32 {v(X)}, {v(TID)}, 3, 2", f"v_and_b32 {v(Y)}, 3, {v(TID)}", f"v_xor_b32 {v(Y)}, {v(Y)}, {v(X)}")
    lin(e,vGs+2,TID,[(2,6,64)]); e(f"v_lshl_add_u32 {v(vGs+2)}, {v(Y)}, 4, {v(vGs+2)}")
    vGv=vGs+2
    e(f"s_lshl_b32 {s(sT0)}, {s(sH)}, 7", f"s_lshl_b32 {s(sT1)}, {s(sI)}, 2", f"s_add_u32 {s(sT0)}, {s(sT0)}, {s(sT1)}")
    lin(e,vF,TID,[(0,8,1<<20)]); e(f"v_min_u32 {v(vF)}, 1, {v(vF)}", f"v_lshlrev_b32 {v(vF)}, 30, {v(vF)}", f"v_add_u32 {v(vF)}, {KVRDY}, {v(vF)}", f"v_add_u32 {v(vF)}, {s(sT0)}, {v(vF)}")
    def wreg(m,kk,n=4,o=0):
        return a(4*kk+o,n) if m=="K" else a(128+4*kk+o,n) if m=="Q" else v(128+4*kk+o,n)
    for n in range(25):
        if n<24: e.wait(toks[n])
        e("s_barrier")
        if n>=1 and n+8<24: issue(n+8)
        if n==24: break
        m,c=order[n]; base=aT+4 if m=="V" else aT
        for q in range(4):
            if q: e(f"v_add_u32 {v(base+2)}, {q*SREG}, {v(base)}", f"v_add_u32 {v(base+3)}, {q*SREG}, {v(base+1)}")
            for u in range(2):
                e.lgop(f"ds_read_b64_tr_b16 {wreg(m,4*c+q,2,2*u)}, {v(base+u+(2 if q else 0))} offset:{(n%9)*4096}")
        e.drain(vm=False)
    srd(e,pBX,2097152)
    def xload(buf):
        tk=[]
        e(f"s_lshl_b32 {s(sT1)}, {s(sW)}, 12", f"s_add_u32 {s(sT1)}, {s(sT1)}, {s(sA)}", f"s_mul_i32 {s(sT2)}, {s(sW)}, {8*XS}", f"s_add_u32 {s(sT2)}, {s(sT2)}, {s(buf)}")
        for n in range(8):
            e(f"s_add_u32 m0, {s(sT2)}, {n*XS}", f"s_add_u32 {s(sT0)}, {s(sT1)}, {(16*(n>>2)+(n&3))*1024}")
            tk.append(e.vmop(f"buffer_load_dwordx4 {v(vXs)}, {WTR}, {s(sT0)} offen lds"))
        return tk
    e(f"s_mov_b32 {s(sSeg)}, {s(sI)}", f"s_mov_b32 {s(sCnt)}, 0", f"s_lshl_b32 {s(sA)}, {s(sSeg)}, 15", f"s_mov_b32 {s(sB)}, 0", f"s_mov_b32 {s(sG)}, {f2u(128**-0.5*math.log2(math.e))}")
    xload(sB)
    wait_team(e,name,abort,XF,XF+1)
    e.drain(); e("s_barrier")
    e.label(name+"_seg")
    e.forget()
    e(f"s_add_u32 {s(sA)}, {s(sA)}, {NWORK<<15}", f"s_xor_b32 {s(sB)}, {s(sB)}, {XB}")
    xt=xload(sB)
    fr={}
    def rd(kk): fr[kk]=e.lgop(f"ds_read_b128 {v(XF+4*(kk&3),4)}, {v(vXr)} offset:{32*kk}")
    for kk in range(3): rd(kk)
    for kk in range(32):
        e.wait(fr[kk]); x=v(XF+4*(kk&3),4)
        M32(e,v(ACC,16),wreg("K",kk),x,kk==0)
        if kk+3<32: rd(kk+3)
        M32(e,v(ACC+16,16),x,wreg("V",kk),kk==0)
        M32(e,v(ACC+32,16),wreg("Q",kk),x,kk==0)
    e(f"v_xor_b32 {v(vXr+40)}, 16, {v(vEw)}", f"v_xor_b32 {v(vXr+41)}, 16, {v(vEv)}")
    PK=112
    for q in range(8): e(cvt(PK+q,ACC+2*q,ACC+2*q+1))
    e.lgop(f"ds_write_b128 {v(vEw)}, {v(PK,4)}"); e.lgop(f"ds_write_b128 {v(vXr+40)}, {v(PK+4,4)}")
    for q in range(8): e(cvt(PK+8+q,ACC+16+2*q,ACC+17+2*q))
    e.lgop(f"ds_write_b128 {v(vEv)}, {v(PK+8,4)}"); e.lgop(f"ds_write_b128 {v(vXr+41)}, {v(PK+12,4)}")
    for q in range(16): e(f"v_mul_f32 {v(ACC+32+q)}, {s(sG)}, {v(ACC+32+q)}")
    for q in range(8): e(cvt(ACC+q,ACC+32+2*q,ACC+33+2*q))
    e.lgop(f"ds_write_b128 {v(vEw)}, {v(ACC,4)} offset:8192"); e.lgop(f"ds_write_b128 {v(vXr+40)}, {v(ACC+4,4)} offset:8192")
    e(f"s_cmp_eq_u32 {s(sB)}, 0", f"s_cselect_b32 {s(sT0)}, {(-XB)&0xffffffff}, {XB}" if False else f"s_mov_b32 {s(sT0)}, {XB}")
    e(f"s_cselect_b32 {s(sT1)}, -1, 1", f"s_mul_i32 {s(sT0)}, {s(sT0)}, {s(sT1)}", f"v_add_u32 {v(vXr)}, {s(sT0)}, {v(vXr)}")
    e(f"v_mov_b32 {v(XF)}, {s(sCnt)}")
    e.drain(); e("s_barrier")
    e.vmop(f"buffer_store_dword {v(XF)}, {v(vF)}, {WSR}, 0 offen sc1")
    rb=[e.lgop(f"ds_read_b128 {v(ACC+4*q,4)}, {v(vEr)} offset:{4096*q}") for q in range(6)]
    e(f"s_lshl_b32 {s(sT0)}, {s(sSeg)}, 18", f"s_lshl_b32 {s(sT1)}, {s(sH)}, 13", f"s_add_u32 {s(sT0)}, {s(sT0)}, {s(sT1)}")
    e(f"s_add_u32 {s(sD)}, {s(sT0)}, {KX}", f"s_add_u32 {s(sE)}, {s(sT0)}, {QX}", f"s_add_u32 {s(sF)}, {s(sT0)}, {VT}", f"s_add_u32 {s(sT1)}, {s(sF)}, 4096")
    for q in (0,1,4,5,2,3):
        e.wait(rb[q])
        if q<4: e.vmop(f"buffer_store_dwordx4 {v(ACC+4*q,4)}, {v(vGs)}, {WSR}, {s(sD if q<2 else sE)} offen offset:{2048*(q&1)} sc1")
        else: e.vmop(f"buffer_store_dwordx4 {v(ACC+4*q,4)}, {v(vGv)}, {WSR}, {s(sF if q==4 else sT1)} offen sc1")
    e(f"s_add_u32 {s(sSeg)}, {s(sSeg)}, {NWORK}", f"s_add_u32 {s(sCnt)}, {s(sCnt)}, 1")
    e("s_barrier")
    e(f"s_cmp_lt_u32 {s(sSeg)}, 64", f"s_cbranch_scc1 {name}_seg")
    e(f"v_mov_b32 {v(XF)}, 10")
    e.drain(); e("s_barrier")
    e(f"buffer_store_dword {v(XF)}, {v(vF)}, {WSR}, 0 offen sc1")
    e.drain()

def xlane_red(e, op, r, t):
    for sw in ("v_permlane32_swap_b32","v_permlane16_swap_b32"):
        e(f"v_mov_b32 {v(t)}, {v(r)}", f"{sw} {v(t)}, {v(r)}", f"{op} {v(r)}, {v(r)}, {v(t)}")
def att(e, name, abort, nset):
    L_MEM=0; L_KM=8192; L_VM=10240
    vLin,vQ,vK,vV,vWr,vRk,vRv,vCan,vRdy,vLi,vMask,vF,t0,t1,vIdx,t2=0,1,2,3,4,5,6,7,8,9,10,11,12,13,14,15
    assert vIdx==C.vIdx
    MF=C.MF; AK=52; AV=60; QF=68; KF=84; VF=116; S=132; KM=144; VMr=160; PP=168; O=176; ZZ=192
    get_tid(e,TID)
    dma_addr(e,200,None,None)
    order=[(m,ks,0) for m in "KV" for ks in range(8)]
    SG=Stager(e,order,lambda n,tau,ridx: a(16*n+8*tau+2*ridx,2),dict(K=pWK,V=pWV),200,None,204,9,C.L_W,C.WREG)
    SG.start()
    tr_addr(e,204,C.L_W,C.WREG)
    lin(e,vLin,TID,[(0,6,16)])
    lin(e,vQ,TID,[(0,4,256),(6,1,4096),(4,2,16)],tmp=X)
    lin(e,vK,TID,[(2,2,2048),(0,2,256),(4,2,16)],tmp=X)
    lin(e,vV,TID,[(7,1,4096),(2,2,512),(0,2,64),(4,2,16)],tmp=X)
    lin(e,vWr,TID,[(7,1,1024),(2,2,128),(6,1,64),(0,2,16),(4,2,4)],L_KM,tmp=X)
    lin(e,t2,TID,[(6,2,512),(0,4,16),(4,2,4)],L_VM,tmp=X)
    vWv=t2
    lin(e,vRk,TID,[(4,2,128),(2,2,16),(0,1,8)],L_KM,tmp=X)
    lin(e,vRv,TID,[(7,1,1024),(2,2,128),(0,2,16),(4,1,8)],L_VM,tmp=X)
    lin(e,vCan,TID,[(0,6,64),(1,4,4)],tmp=X)
    e(f"v_and_b32 {v(vLi)}, 63, {v(TID)}", f"v_min_u32 {v(vLi)}, {NWORK-1}, {v(vLi)}", f"s_lshl_b32 {s(sT0)}, {s(sH)}, 7", f"s_add_u32 {s(sT0)}, {s(sT0)}, {KVRDY}", f"v_lshl_add_u32 {v(vRdy)}, {v(vLi)}, 2, {s(sT0)}")
    lin(e,vMask,TID,[(0,4,1),(6,1,16)],tmp=X); lin(e,Y,TID,[(4,2,8)]); e(f"v_sub_u32 {v(vMask)}, {v(vMask)}, {v(Y)}")
    e(f"s_lshl_b32 {s(sT0)}, {s(sH)}, 2")
    lin(e,vF,TID,[(0,8,1)]); e(f"v_min_u32 {v(vF)}, 1, {v(vF)}", f"v_lshlrev_b32 {v(vF)}, 30, {v(vF)}", f"v_add_u32 {v(vF)}, {OFLG}, {v(vF)}", f"v_add_u32 {v(vF)}, {s(sT0)}, {v(vF)}")
    e(f"v_and_b32 {v(X)}, 2, {v(TID)}", f"v_mul_u32_u24 {v(X)}, 0x5555, {v(X)}", f"v_add_u32 {v(vIdx)}, 0x4444, {v(X)}")
    e(f"v_mov_b32 {v(ZZ)}, 0", f"v_mov_b32 {v(ZZ+1)}, 0xff800000", f"v_mov_b32 {v(ZZ+2)}, 1", f"v_mov_b32 {v(ZZ+3)}, {f2u(-999292928.0*math.log2(math.e))}")
    e(f"s_mov_b32 {s(sSent)}, {SENT}")
    SG.finish()
    e(f"s_mov_b32 {s(sSeg)}, {s(sI)}", f"s_lshl_b32 {s(sT0)}, {s(sW)}, 11", f"s_add_u32 m0, {s(sT0)}, {L_MEM}")
    e.label(name+"_seg")
    e.forget()
    e.label(name+"_rw")
    e(f"buffer_load_dword {v(t0)}, {v(vRdy)}, {WSR}, 0 offen sc1"); spin(e,abort); e.drain(lg=False)
    e(f"v_mad_u32_u24 {v(t0)}, {v(t0)}, {NWORK}, {v(vLi)}", f"v_cmp_ge_u32 vcc, {s(sSeg)}, {v(t0)}", f"s_cbranch_vccnz {name}_rw")
    e(f"s_lshl_b32 {s(sT0)}, {s(sSeg)}, 18", f"s_lshl_b32 {s(sT1)}, {s(sH)}, 13", f"s_add_u32 {s(sT0)}, {s(sT0)}, {s(sT1)}")
    e(f"s_add_u32 {s(sD)}, {s(sT0)}, {KX}", f"s_add_u32 {s(sE)}, {s(sT0)}, {QX}", f"s_add_u32 {s(sF)}, {s(sT0)}, {VT}")
    ld=[]
    for kk in range(4):
        ld.append([e.vmop(f"buffer_load_dwordx4 {v(QF+4*kk,4)}, {v(vQ)}, {WSR}, {s(sE)} offen offset:{64*kk} sc1")]+
                  [e.vmop(f"buffer_load_dwordx4 {v(KF+16*T+4*kk,4)}, {v(vK)}, {WSR}, {s(sD)} offen offset:{1024*T+64*kk} sc1") for T in range(2)])
    for t in range(4): e.vmop(f"buffer_load_dwordx4 {v(VF+4*t,4)}, {v(vV)}, {WSR}, {s(sF)} offen offset:{2048*(t>>1)+256*(t&1)} sc1")
    e(f"v_mfma_f32_16x16x1_4b_f32 {v(AK,16)}, {v(ZZ)}, {v(ZZ)}, 0")
    e(f"s_lshl_b32 {s(sA)}, {s(sSeg)}, 13", f"s_lshl_b32 {s(sT0)}, {s(sW)}, 11", f"s_add_u32 {s(sA)}, {s(sA)}, {s(sT0)}", f"s_add_u32 {s(sA)}, {s(sA)}, {MEMH}")
    e(f"s_and_b32 {s(sT0)}, {s(sW)}, 1", f"s_lshl1_add_u32 {s(sT0)}, {s(sSeg)}, {s(sT0)}", f"s_lshl_b32 {s(sT0)}, {s(sT0)}, 5", f"s_add_u32 {s(sT0)}, {s(sT0)}, {s(sH)}", f"s_lshl_b32 {s(sT0)}, {s(sT0)}, 12")
    e(f"s_lshr_b32 {s(sT1)}, {s(sW)}, 1", f"s_lshl_b32 {s(sT1)}, {s(sT1)}, 11", f"s_add_u32 {s(sB)}, {s(sT0)}, {s(sT1)}", f"s_add_u32 {s(sB)}, {s(sB)}, {OB}", f"s_lshl_b32 {s(sG)}, {s(sSeg)}, 7")
    for kk in range(4):
        e.wait(ld[kk])
        for T in range(2): M16(e,v(S+4*T,4),v(KF+16*T+4*kk,4),v(QF+4*kk,4),kk==0)
    for x in range(8):
        e(f"v_cmp_le_i32 vcc, {x}, {v(vMask)}", f"v_cndmask_b32 {v(S+x)}, {v(ZZ+3)}, {v(S+x)}, vcc")
    e.label(name+"_mp")
    for k in range(2): e(f"buffer_load_dwordx4 {v(MF+4*k,4)}, {v(vLin)}, {WSR}, {s(sA)} offen offset:{1024*k} sc1")
    spin(e,abort); e.drain()
    e(f"s_mov_b64 {s(sM,2)}, 0")
    for k in range(8): e(f"v_cmp_eq_u32 vcc, {s(sSent)}, {v(MF+k)}", f"s_or_b64 {s(sM,2)}, {s(sM,2)}, vcc")
    e(f"s_cbranch_scc1 {name}_mp")
    e(f"s_lshl_b32 {s(sT0)}, {s(sW)}, 11", f"v_add_u32 {v(t0)}, {s(sT0)}, {v(vLin)}")
    for k in range(2): e(f"ds_write_b128 {v(t0)}, {v(MF+4*k,4)} offset:{L_MEM+1024*k}")
    e.drain(); e("s_barrier")
    fr=[e.lgop(f"ds_read_b128 {v(MF+4*k,4)}, {v(vLin)} offset:{L_MEM+1024*k}") for k in range(8)]
    for ks in range(8):
        e.wait(fr[ks])
        for t in range(2): _SMF(e,AK+4*t,MF+4*ks,a(16*ks+8*t,8))
    w=[]
    for ks in range(8):
        for t in range(2): _SMF(e,AV+4*t,MF+4*ks,a(128+16*ks+8*t,8))
        if ks in (1,2):
            t=ks-1; b=AK+4*t
            e(add(b,b,b+2),add(b+1,b+1,b+3),cvt(b,b,b+1)); w.append(e.lgop(f"ds_write_b32 {v(vWr)}, {v(b)} offset:{512*t}"))
        if ks==5:
            e.wait(w); e("s_barrier")
            kr=[e.lgop(f"ds_read_b64_tr_b16 {v(KM+2*q,2)}, {v(vRk)} offset:{512*(q>>1)+64*(q&1)}") for q in range(8)]
    for t in range(2):
        b=AV+4*t
        e(add(b,b,b+2),add(b+1,b+1,b+3),cvt(b,b,b+1)); w.append(e.lgop(f"ds_write_b32 {v(vWv)}, {v(b)} offset:{256*t}"))
    e.wait(kr)
    for kk in range(4): M16(e,v(S+8,4),v(KM+4*kk,4),v(QF+4*kk,4),kk==0)
    e.wait(w); e("s_barrier")
    vr=[e.lgop(f"ds_read_b64 {v(VMr+2*t,2)}, {v(vRv)} offset:{512*(t>>1)+64*(t&1)}") for t in range(4)]
    e(f"v_max3_f32 {v(t0)}, {v(S)}, {v(S+1)}, {v(S+2)}", f"v_max3_f32 {v(t1)}, {v(S+3)}, {v(S+4)}, {v(S+5)}", f"v_max3_f32 {v(t0)}, {v(t0)}, {v(S+6)}, {v(S+7)}")
    e(f"v_max3_f32 {v(t1)}, {v(t1)}, {v(S+8)}, {v(S+9)}", f"v_max3_f32 {v(t0)}, {v(t0)}, {v(S+10)}, {v(S+11)}", f"v_max_f32 {v(t0)}, {v(t0)}, {v(t1)}")
    xlane_red(e,"v_max_f32",t0,t1)
    for x in range(4): e(f"v_mov_b32_dpp {v(S+8+x)}, {v(ZZ+1)} quad_perm:[0,1,2,3] row_mask:0xc bank_mask:0xf")
    for x in range(12): e(f"v_sub_f32 {v(S+x)}, {v(S+x)}, {v(t0)}", f"v_exp_f32 {v(S+x)}, {v(S+x)}")
    for x in range(6): e(cvt(PP+x,S+2*x,S+2*x+1))
    e.wait(vr)
    for t in range(4):
        M16(e,v(O+4*t,4),v(VF+4*t,4),v(PP,4),True)
    for t in range(4):
        e(f"v_mfma_f32_16x16x16_bf16 {v(O+4*t,4)}, {v(VMr+2*t,2)}, {v(PP+4,2)}, {v(O+4*t,4)}")
    for x in range(6):
        e(f"v_lshlrev_b32 {v(S+2*x)}, 16, {v(PP+x)}", f"v_and_b32 {v(S+2*x+1)}, 0xffff0000, {v(PP+x)}")
    for st_ in (6,3):
        for x in range(st_): e(add(S+x,S+x,S+x+st_))
    e(add(t0,S,S+1),add(t0,t0,S+2))
    xlane_red(e,"v_add_f32",t0,t1)
    e(f"v_rcp_f32 {v(t0)}, {v(t0)}")
    for x in range(16): e(mul(O+x,O+x,t0))
    for x in range(8): e(cvt(O+x,O+2*x,O+2*x+1))
    for q in range(2): e(f"buffer_store_dwordx4 {v(O+4*q,4)}, {v(vLin)}, {WSR}, {s(sB)} offen offset:{1024*q} sc1")
    e.drain(); e("s_barrier")
    e(f"buffer_store_dword {v(ZZ+2)}, {v(vF)}, {WSR}, {s(sG)} offen sc1")
    e(f"s_add_u32 {s(sSeg)}, {s(sSeg)}, {nset}", f"s_cmp_lt_u32 {s(sSeg)}, 64", f"s_cbranch_scc1 {name}_seg")
    e.drain()

def outp(e, name, abort, nset):
    vLin,vD,vT,vFl,vR,vO,t0=0,1,2,3,4,5,6
    ACC=8; RB=16; OF=64
    get_tid(e,TID)
    e(f"s_lshl_b32 {s(sT0)}, {s(sA)}, 6")
    lin(e,vD,TID,[(2,4,1024),(0,2,16),(6,2,1<<20)],tmp=X,base=s(sT0))
    lin(e,vT,TID,[(4,2,512),(2,2,64),(0,2,16),(6,2,32768)],tmp=X)
    srd(e,pWO,0x400000)
    e(f"s_lshl_b32 {s(sT2)}, {s(sW)}, 15")
    toks={}
    def issue(n):
        tk=[]
        for q in range(4):
            e(f"s_add_u32 m0, {s(sT2)}, {(n%8)*4096+q*1024}", f"s_mov_b32 {s(sT0)}, {(64*n+16*q)*1024}")
            tk.append(e.vmop(f"buffer_load_dwordx4 {v(vD)}, {WTR}, {s(sT0)} offen lds"))
        toks[n]=tk
    for n in range(8): issue(n)
    lin(e,vLin,TID,[(0,6,16)])
    lin(e,vFl,TID,[(0,5,4)],OFLG)
    lin(e,vR,TID,[(0,6,16),(6,2,2048)],131072,tmp=X)
    e(f"s_lshl_b32 {s(sT0)}, {s(sA)}, 6", f"s_add_u32 {s(sT0)}, {s(sT0)}, 1024")
    lin(e,vO,TID,[(0,4,2048),(4,2,16)],tmp=X,base=s(sT0))
    for n in range(16):
        e.wait(toks[n])
        for kq in range(2):
            for tau in range(2):
                for u in range(2):
                    e.lgop(f"ds_read_b64_tr_b16 {a(16*n+8*kq+4*tau+2*u,2)}, {v(vT)} offset:{(n%8)*4096+2048*kq+256*u+8*tau}")
        e.drain(vm=False)
        if n+8<16: issue(n+8)
    srd(e,pOUT,4194304)
    e.label(name+"_seg")
    e.forget()
    e(f"s_lshr_b32 {s(sT0)}, {s(sSeg)}, 1", f"s_lshl_b32 {s(sG)}, {s(sT0)}, 7")
    e(f"s_lshl_b32 {s(sB)}, {s(sSeg)}, 17", f"s_lshl_b32 {s(sT0)}, {s(sW)}, 15", f"s_add_u32 {s(sB)}, {s(sB)}, {s(sT0)}", f"s_add_u32 {s(sB)}, {s(sB)}, {OB}", f"s_lshl_b32 {s(sD)}, {s(sSeg)}, 15")
    l1=name+"_fw"; l2=name+"_fo"
    e.label(l1)
    e(f"buffer_load_dword {v(t0)}, {v(vFl)}, {WSR}, {s(sG)} offen sc1"); spin(e,abort); e.drain(lg=False)
    e(f"v_cmp_ne_u32 vcc, 1, {v(t0)}", f"s_cbranch_vccz {l2}", "s_sleep 2", f"s_branch {l1}")
    e.label(l2)
    ld=[]
    for k in range(32):
        if k and k%4==0: e(f"s_add_u32 {s(sB)}, {s(sB)}, 4096")
        ld.append(e.vmop(f"buffer_load_dwordx4 {v(OF+4*k,4)}, {v(vLin)}, {WSR}, {s(sB)} offen offset:{1024*(k%4)} sc1"))
    for k in range(32):
        e.wait(ld[k])
        for tau in range(2): M16(e,v(ACC+4*tau,4),a(8*k+4*tau,4),v(OF+4*k,4),k==0)
    for tau in range(2): e(f"ds_write_b128 {v(vR)}, {v(ACC+4*tau,4)} offset:{1024*tau}")
    e.drain(); e("s_barrier")
    e(f"s_cmp_lg_u32 {s(sW)}, 0", f"s_cbranch_scc1 {name}_nx")
    for q in range(6): e(f"ds_read_b128 {v(RB+4*q,4)}, {v(vR)} offset:{2048+1024*q}")
    e.drain()
    for q in range(3):
        for x in range(8): e(add(ACC+x,ACC+x,RB+8*q+x))
    for x in range(4): e(cvt(RB+x,ACC+2*x,ACC+2*x+1))
    e(f"buffer_store_dwordx4 {v(RB,4)}, {v(vO)}, {WTR}, {s(sD)} offen")
    e.label(name+"_nx")
    e("s_barrier")
    e(f"s_add_u32 {s(sSeg)}, {s(sSeg)}, {nset}", f"s_cmp_lt_u32 {s(sSeg)}, 128", f"s_cbranch_scc1 {name}_seg")
    e.drain()

def fft_a(e, name, abort):
    vLin,vXr,vSt,vK,vP,t0,t1=0,1,2,3,4,5,6
    ACC=64; XF=16; F=128
    get_tid(e,TID)
    lin(e,vLin,TID,[(0,6,16)])
    srd(e,pAX,2097152)
    e(f"s_lshr_b32 {s(sT1)}, {s(sW)}, 1", f"s_lshl_b32 {s(sT1)}, {s(sT1)}, 5", f"s_and_b32 {s(sT0)}, {s(sW)}, 1", f"s_lshl_b32 {s(sT0)}, {s(sT0)}, 3", f"s_add_u32 {s(sT1)}, {s(sT1)}, {s(sT0)}")
    e(f"s_lshl_b32 {s(sT1)}, {s(sT1)}, 15", f"s_lshl_b32 {s(sT0)}, {s(sB)}, 10", f"s_add_u32 {s(sT1)}, {s(sT1)}, {s(sT0)}", f"s_mul_i32 {s(sT2)}, {s(sW)}, {16*XS}")
    for n in range(16):
        pi=16*((n>>2)&1)+4*(n>>3)+(n&3)
        e(f"s_add_u32 m0, {s(sT2)}, {n*XS}", f"s_add_u32 {s(sT0)}, {s(sT1)}, {pi<<15}")
        e.vmop(f"buffer_load_dwordx4 {v(vLin)}, {WTR}, {s(sT0)} offen lds")
    lin(e,vXr,TID,[(0,5,XS),(5,1,16)],tmp=X)
    e(f"s_lshl_b32 {s(sT0)}, {s(sA)}, 7")
    lin(e,Y,TID,[(0,5,1),(6,2,32)],tmp=X,base=s(sT0))
    e(f"s_lshl_b32 {s(sT0)}, {s(sB)}, 7", f"s_add_u32 {s(sT0)}, {s(sT0)}, {X1T}")
    lin(e,vSt,TID,[(5,1,32)],base=s(sT0)); e(f"v_lshl_add_u32 {v(vSt)}, {v(Y)}, 12, {v(vSt)}")
    e(f"v_cmp_lt_u32 vcc, 256, {v(Y)}", f"v_subrev_u32 {v(Z)}, 256, {v(Y)}", f"v_cndmask_b32 {v(Y)}, {v(Y)}, {v(Z)}, vcc", f"v_mov_b32 {v(Z)}, {f2u(0.25)}", f"v_cndmask_b32 {v(vP)}, 0, {v(Z)}, vcc")
    e(f"v_cvt_f32_u32 {v(vK)}, {v(Y)}", f"v_mul_f32 {v(vK)}, {f2u(1/512)}, {v(vK)}")
    lin(e,Y,TID,[(5,1,8)]); e(f"v_cvt_f32_u32 {v(Y)}, {v(Y)}", f"v_fmac_f32 {v(vP)}, {v(Y)}, {v(vK)}")
    for q in range(128):
        d0=16*(q>>2)+2*(q&3)
        e(f"v_fmamk_f32 {v(t0)}, {v(vK)}, {f2u(d0)}, {v(vP)}", f"v_fmamk_f32 {v(t1)}, {v(vK)}, {f2u(d0+1)}, {v(vP)}", f"v_cos_f32 {v(t0)}, {v(t0)}", f"v_cos_f32 {v(t1)}, {v(t1)}", cvt(F+q,t0,t1))
    e.drain(); e("s_barrier")
    fr={}
    def rd(n): fr[n]=e.lgop(f"ds_read_b128 {v(XF+4*(n&7),4)}, {v(vXr)} offset:{32*(n>>1)+XB*(n&1)}")
    for n in range(6): rd(n)
    for n in range(64):
        e.wait(fr[n])
        M32(e,v(ACC+16*(n&1),16),v(XF+4*(n&7),4),v(F+4*(n>>1),4),n<2)
        if n+6<64: rd(n+6)
    for q in range(16): e(cvt(XF+q,ACC+2*q,ACC+2*q+1))
    for q in range(4): e(f"buffer_store_dwordx4 {v(XF+4*q,4)}, {v(vSt)}, {WSR}, 0 offen offset:{64*(q>>1)+16*(q&1)} sc1")
    e.drain(); e("s_barrier")
    l=e.newlabel(name+"_n")
    e(f"s_cmp_lg_u32 {s(sW)}, 0", f"s_cbranch_scc1 {l}")
    bump_counter(e,D_GA,t0,t1)
    e.label(l); e.forget()

def fft_b(e, name, abort):
    vLin,vTr,vSt,vK,vP,vP2,t0,t1=0,1,2,3,4,5,6,7
    ACC=64; XF=16; F=128
    get_tid(e,TID)
    lin(e,vLin,TID,[(0,6,16)])
    lin(e,vTr,TID,[(5,1,512),(2,2,64),(4,1,32),(0,2,8)],tmp=X)
    e(f"s_lshl_b32 {s(sT0)}, {s(sA)}, 7")
    lin(e,Y,TID,[(2,1,16),(3,2,4),(0,2,1),(6,2,32)],tmp=X,base=s(sT0))
    e(f"v_cvt_f32_u32 {v(vK)}, {v(Y)}", f"v_mul_f32 {v(vK)}, {f2u(1/512)}, {v(vK)}")
    lin(e,Y,TID,[(5,1,8)]); e(f"v_cvt_f32_u32 {v(Z)}, {v(Y)}", f"v_mul_f32 {v(vP)}, {v(Z)}, {v(vK)}", f"v_add_f32 {v(vP2)}, {f2u(0.25)}, {v(vP)}")
    e(f"v_cmp_eq_u32 vcc, 0, {v(Y)}")
    e(f"s_lshl_b32 {s(sT0)}, {s(sA)}, 8", f"s_lshl_b32 {s(sT1)}, {s(sB)}, 17", f"s_add_u32 {s(sT0)}, {s(sT0)}, {s(sT1)}")
    lin(e,vSt,TID,[(0,5,2048),(6,2,64),(5,1,32)],tmp=X,base=s(sT0))
    for q in range(128):
        k0=16*(q>>2)+2*(q&3)
        for t,k in ((t0,k0),(t1,k0+1)):
            if k<256: e(f"v_fmamk_f32 {v(t)}, {v(vK)}, {f2u(k)}, {v(vP)}")
            elif k==256: e(f"v_mul_f32 {v(t)}, {f2u(256.0)}, {v(vK)}", f"v_cndmask_b32 {v(t)}, {v(vP2)}, {v(t)}, vcc")
            else: e(f"v_fmamk_f32 {v(t)}, {v(vK)}, {f2u(k-256)}, {v(vP2)}")
        e(f"v_cos_f32 {v(t0)}, {v(t0)}", f"v_cos_f32 {v(t1)}, {v(t1)}", cvt(F+q,t0,t1))
    wait_counter(e,name,abort,D_COL,257,t0,t1)
    e("s_barrier")
    e(f"s_lshr_b32 {s(sT0)}, {s(sW)}, 1", f"s_lshl1_add_u32 {s(sT0)}, {s(sB)}, {s(sT0)}", f"s_mul_i32 {s(sT1)}, {s(sT0)}, {YBS}", f"s_and_b32 {s(sT0)}, {s(sW)}, 1", f"s_lshl_b32 {s(sT0)}, {s(sT0)}, 14")
    e(f"s_add_u32 {s(sT1)}, {s(sT1)}, {s(sT0)}", f"s_add_u32 {s(sT1)}, {s(sT1)}, {YB}", f"s_lshl_b32 {s(sT2)}, {s(sW)}, 14")
    for n in range(4):
        e(f"s_add_u32 m0, {s(sT2)}, {4096*n}", f"s_add_u32 {s(sT0)}, {s(sT1)}, {4096*n}")
        for q in range(4): e(f"buffer_load_dwordx4 {v(vLin)}, {WSR}, {s(sT0)} offen offset:{1024*q} sc1 lds")
    srd(e,pOUT,4194304)
    e.drain(); e("s_barrier")
    fr={}
    def rd(n): fr[n]=[e.lgop(f"ds_read_b64_tr_b16 {v(XF+4*(n&7)+2*u,2)}, {v(vTr)} offset:{1024*(n>>1)+32768*(n&1)+256*u}") for u in range(2)]
    for n in range(6): rd(n)
    for n in range(64):
        e.wait(fr[n])
        M32(e,v(ACC+16*(n&1),16),v(F+4*(n>>1),4),v(XF+4*(n&7),4),n<2)
        if n+6<64: rd(n+6)
    for q in range(16): e(cvt(XF+q,ACC+2*q,ACC+2*q+1))
    e(f"s_mov_b32 {s(sT0)}, 65536")
    for q in range(4): e(f"buffer_store_dwordx4 {v(XF+4*q,4)}, {v(vSt)}, {WTR}, {s(sT0) if q>>1 else 0} offen offset:{16*(q&1)}")
    e.drain(); e("s_barrier")

def fft_col(e, name, abort):
    vZ,vWo,vSt,vC,vH,t0,t1,t2,t3,t4,t5=0,1,2,3,4,5,6,7,8,9,10
    ZF=16
    ACC=64
    WF=128
    get_tid(e,TID)
    def sig(x): return 16*(x>>4)+8*((x>>2)&1)+4*((x>>3)&1)+(x&3)
    SIG=lambda m: [(4,1,16*m),(2,1,8*m),(3,1,4*m),(0,2,m)]
    e(f"s_lshl_b32 {s(sT0)}, {s(sA)}, 1")
    lin(e,vWo,TID,SIG(514)+[(5,1,8*64*514)],tmp=X,base=s(sT0))
    for p,base in ((pWR,WF),(pWI,WF+32)):
        srd(e,p,2048*514)
        for nt in range(2):
            for r in range(16):
                e(f"s_mov_b32 {s(sT0)}, {(32*nt+64*(16*(r>>3)+(r&7)))*514}")
                e(f"buffer_load_short_d16_hi {v(base+16*nt+r)}, {v(vWo)}, {WTR}, {s(sT0)} offen")
        e("s_waitcnt vmcnt(24)")
    lin(e,Y,TID,SIG(1),tmp=X); e(f"v_cvt_f32_u32 {v(vC)}, {v(Y)}")
    lin(e,Y,TID,[(5,1,8)]); e(f"v_cvt_f32_u32 {v(vH)}, {v(Y)}")
    aC64,aS64,aN64,aC32,aS32,aN32=0,32,64,96,104,112
    def table(N,ntile,nkk,c_,s_,n_):
        for nt in range(ntile):
            e(f"v_add_f32 {v(t4)}, {f2u(32.0*nt)}, {v(vC)}", f"v_mul_f32 {v(t4)}, {f2u(1/N)}, {v(t4)}", f"v_mul_f32 {v(t5)}, {v(vH)}, {v(t4)}")
            for q in range(4*nkk):
                k0=16*(q>>2)+2*(q&3); r=4*nkk*nt+q
                e(f"v_fmamk_f32 {v(t0)}, {v(t4)}, {f2u(k0)}, {v(t5)}", f"v_fmamk_f32 {v(t1)}, {v(t4)}, {f2u(k0+1)}, {v(t5)}")
                e(f"v_cos_f32 {v(t2)}, {v(t0)}", f"v_cos_f32 {v(t3)}, {v(t1)}", f"v_sin_f32 {v(t0)}, {v(t0)}", f"v_sin_f32 {v(t1)}, {v(t1)}")
                e(cvt(t2,t2,t3), cvt(t0,t0,t1), f"v_accvgpr_write_b32 {a(c_+r)}, {v(t2)}", f"v_accvgpr_write_b32 {a(s_+r)}, {v(t0)}", f"v_xor_b32 {v(t0)}, 0x80008000, {v(t0)}", f"v_accvgpr_write_b32 {a(n_+r)}, {v(t0)}")
    table(64,2,4,aC64,aS64,aN64); table(32,1,2,aC32,aS32,aN32)
    lin(e,vZ,TID,SIG(128)+[(5,1,16)],tmp=X)
    lin(e,vSt,TID,SIG(YBS)+[(5,1,16)],tmp=X)
    e(f"s_lshl_b32 {s(sD)}, {s(sA)}, 12", f"s_add_u32 {s(sD)}, {s(sD)}, {X1T}", f"s_lshl_b32 {s(sF)}, {s(sA)}, 6", f"s_add_u32 {s(sF)}, {s(sF)}, {YB}")
    e(f"s_and_b32 {s(sT0)}, {s(sA)}, 255", f"s_cmp_eq_u32 {s(sT0)}, 0")
    e(f"s_cselect_b32 {s(sT0)}, 0x40000000, 0", f"s_mov_b32 {s(sCnt)}, {f2u(2.0/(512*2048))}", f"s_cselect_b32 {s(sCnt)}, {f2u(1.0/(512*2048))}, {s(sCnt)}")
    e(f"s_add_u32 {s(sE)}, {s(sD)}, {256<<12}", f"s_add_u32 {s(sE)}, {s(sE)}, {s(sT0)}", f"s_add_u32 {s(sG)}, {s(sF)}, {256<<6}", f"s_add_u32 {s(sG)}, {s(sG)}, {s(sT0)}")
    wait_counter(e,name,abort,D_GA,128,t0,t1)
    for p,so in ((0,sD),(1,sE)):
        for kk in range(4): e(f"buffer_load_dwordx4 {v(ZF+16*p+4*kk,4)}, {v(vZ)}, {WSR}, {s(so)} offen offset:{32*kk} sc1")
    for q in range(64): e(f"v_and_b32 {v(WF+q)}, 0xffff0000, {v(WF+q)}")
    e.drain()
    def R(t,p): return ACC+32*t+16*p
    def cgemm(nkk, dataA, dreg, creg, conj):
        C_,S_,N_=(aC64,aS64,aN64) if nkk==4 else (aC32,aS32,aN32)
        if conj: S_,N_=N_,S_
        for t in range(2):
            for kk in range(nkk):
                for (p,src,tab,first) in ((0,0,C_,kk==0),(1,1,C_,kk==0),(0,1,S_,False),(1,0,N_,False)):
                    dd=v(dreg(t,src,kk),4); cc=a(tab+creg(t,kk),4)
                    M32(e,v(R(t,p),16),dd if dataA else cc,cc if dataA else dd,first)
    def cmul_pack(getw, preg):
        for t in range(2):
            for r in range(16):
                wr,wi=getw(t,r); x,y=R(t,0)+r,R(t,1)+r
                e(f"v_mul_f32 {v(t2)}, {v(y)}, {v(wi)}", f"v_mul_f32 {v(t3)}, {v(x)}, {v(wi)}", f"v_fma_f32 {v(x)}, {v(x)}, {v(wr)}, -{v(t2)}", f"v_fma_f32 {v(y)}, {v(y)}, {v(wr)}, {v(t3)}")
                if r&1:
                    for p in range(2): e(cvt(preg(t,p,r>>1),R(t,p)+r-1,R(t,p)+r))
    idx=lambda r: 16*(r>>3)+(r&7)
    PT=lambda t,p,q: ZF+16*p+8*t+q
    cgemm(4,True,lambda t,p,kk: ZF+16*p+4*kk,lambda t,kk: 16*t+4*kk,False)
    def tw1(t,r):
        if r==0: e(f"v_add_f32 {v(t4)}, {f2u(32.0*t)}, {v(vC)}", f"v_mul_f32 {v(t4)}, {f2u(-1/2048)}, {v(t4)}", f"v_mul_f32 {v(t5)}, {v(vH)}, {v(t4)}")
        e(f"v_fmamk_f32 {v(t1)}, {v(t4)}, {f2u(idx(r))}, {v(t5)}", f"v_cos_f32 {v(t0)}, {v(t1)}", f"v_sin_f32 {v(t1)}, {v(t1)}")
        return t0,t1
    cmul_pack(tw1,PT)
    cgemm(2,False,lambda t,p,kk: ZF+16*p+8*t+4*kk,lambda t,kk: 4*kk,False)
    cmul_pack(lambda t,r: (WF+16*t+r,WF+32+16*t+r),PT)
    cgemm(2,True,lambda t,p,kk: ZF+16*p+8*t+4*kk,lambda t,kk: 4*kk,True)
    def tw3(t,r):
        if r==0 and t==0: e(f"v_mul_f32 {v(t4)}, {f2u(1/2048)}, {v(vC)}", f"v_mul_f32 {v(t5)}, {v(vH)}, {v(t4)}")
        e(f"v_fmamk_f32 {v(t1)}, {v(t4)}, {f2u(32*t+idx(r))}, {v(t5)}", f"v_cos_f32 {v(t0)}, {v(t1)}", f"v_sin_f32 {v(t1)}, {v(t1)}")
        return t0,t1
    cmul_pack(tw3,PT)
    cgemm(4,True,lambda t,p,kk: ZF+16*p+4*kk,lambda t,kk: 16*t+4*kk,True)
    for q in range(64): e(f"v_mul_f32 {v(ACC+q)}, {s(sCnt)}, {v(ACC+q)}")
    for q in range(32): e(cvt(ZF+q,ACC+2*q,ACC+2*q+1))
    for t in range(2):
        for p,so in ((0,sF),(1,sG)):
            e(f"s_add_u32 {s(sT0)}, {s(so)}, {32*t*YBS}")
            for hh in range(2): e(f"buffer_store_dwordx4 {v(ZF+16*t+8*p+4*hh,4)}, {v(vSt)}, {WSR}, {s(sT0)} offen offset:{32*hh} sc1")
    e.drain()
    bump_counter(e,D_COL,t0,t1); e.forget()
```

```python
import sys, json
from asmlib import *
from workers import *
import chain as C
KNAME="concat_heads__spectral_gfnet__memory_aug_recurrent_mem_tr__prompt_kernel"
def gen(name=KNAME, T=None, diag=False, pfx="L"):
    e=E(); n=pfx
    T2=dict(C.TUNE); T2.update(T or {})
    def stamp(i):
        if diag: e(f"s_memrealtime s[{84+2*i}:{85+2*i}]", "s_waitcnt lgkmcnt(0)")
    e("s_cmp_ge_u32 s2, 256", f"s_cbranch_scc1 {n}_end")
    e("s_load_dwordx16 s[64:79], s[0:1], 0", "s_load_dwordx2 s[80:81], s[0:1], 64", "s_load_dwordx4 s[4:7], s[0:1], 80", "s_load_dwordx2 s[8:9], s[0:1], 96")
    e("s_getreg_b32 s3, hwreg(HW_REG_XCC_ID)", "s_and_b32 s3, s3, 7")
    e(f"s_mov_b32 s10, {WS_BYTES}", "s_mov_b32 s11, 0x20000", f"s_mov_b32 {s(sRetry)}, 0")
    if diag:
        for i in range(84,100): e(f"s_mov_b32 s{i}, 0")
    e("v_lshrrev_b32 v1, 6, v0", f"v_readfirstlane_b32 {s(sW)}, v1", "s_waitcnt lgkmcnt(0)")
    stamp(0)
    e("v_mov_b32 v1, 0", f"s_cmp_lg_u32 {s(sW)}, 0", f"s_cbranch_scc1 {n}_rr")
    e("s_mov_b32 s20, s3", "s_mov_b32 s21, 0", "v_mov_b32 v2, 1", "s_mov_b64 exec, 1")
    e.label(n+"_rs")
    e("s_lshl_b32 s22, s20, 2", "v_mov_b32 v3, s22", "global_atomic_add v4, v3, v2, s[6:7] sc0", "s_waitcnt vmcnt(0)", "v_readfirstlane_b32 s22, v4")
    e("s_cmp_lt_u32 s22, 32", f"s_cbranch_scc1 {n}_rg", "s_add_u32 s20, s20, 1", "s_and_b32 s20, s20, 7", "s_add_u32 s21, s21, 1", "s_cmp_lt_u32 s21, 8", f"s_cbranch_scc1 {n}_rs")
    e("s_mov_b32 s20, 8")
    e.label(n+"_rg")
    e("s_lshl_b32 s20, s20, 5", "s_add_u32 s20, s20, s22", "v_mov_b32 v4, s20", "ds_write_b32 v1, v4", "s_waitcnt lgkmcnt(0)", "s_mov_b64 exec, -1")
    e.label(n+"_rr")
    e("s_barrier", "ds_read_b32 v4, v1", "s_waitcnt lgkmcnt(0)", "v_readfirstlane_b32 s82, v4", "s_barrier")
    e("s_cmp_ge_u32 s82, 256", f"s_cbranch_scc1 {n}_end")
    e("s_cmp_ge_u32 s82, 32", f"s_cbranch_scc1 {n}_work")
    e(f"s_mov_b32 {s(sH)}, s82")
    C.chain(e,n+"c",dict(Q=pWQ,K=pWK,V=pWV,O=pWO),pM0,pDBG,3,T2,None,("","sc1"),diag,True)
    e.label(n+"c_abort"); e.label(n+"c_done")
    if diag: e("s_mov_b32 s86, s56")
    e(f"s_branch {n}_fin")
    e.label(n+"_work")
    e.forget()
    e("s_sub_u32 s83, s82, 32", f"s_mul_i32 {s(sH)}, s83, 9363", f"s_lshr_b32 {s(sH)}, {s(sH)}, 16", f"s_mul_i32 {s(sT0)}, {s(sH)}, 7", f"s_sub_u32 {s(sI)}, s83, {s(sT0)}")
    qkv(e,n+"q",n+"_fin")
    stamp(1)
    e(f"s_cmp_ge_u32 {s(sI)}, 2", f"s_cbranch_scc1 {n}_fft")
    att(e,n+"a",n+"_fin",2)
    e(f"s_branch {n}_fin")
    e.label(n+"_fft")
    e.forget()
    e(f"s_lshl_b32 s83, {s(sH)}, 2", f"s_add_u32 s83, s83, {s(sI)}", "s_sub_u32 s83, s83, 2", f"s_add_u32 {s(sT0)}, {s(sH)}, 128", f"s_cmp_eq_u32 {s(sI)}, 6", f"s_cselect_b32 s83, {s(sT0)}, s83")
    e(f"s_cbranch_scc1 {n}_col")
    e(f"s_and_b32 {s(sA)}, s83, 3", f"s_lshr_b32 {s(sB)}, s83, 2")
    fft_a(e,n+"f",n+"_fin")
    stamp(2)
    e.label(n+"_col")
    e(f"s_mul_i32 {s(sA)}, {s(sW)}, 160", f"s_add_u32 {s(sA)}, {s(sA)}, s83", f"s_cmp_gt_u32 {s(sA)}, 256", f"s_cbranch_scc1 {n}_colx")
    fft_col(e,n+"g",n+"_fin")
    e.label(n+"_colx")
    stamp(3)
    e(f"s_cmp_eq_u32 {s(sI)}, 6", f"s_cbranch_scc1 {n}_fin")
    e(f"s_and_b32 {s(sA)}, s83, 3", f"s_lshr_b32 {s(sB)}, s83, 2")
    fft_b(e,n+"h",n+"_fin")
    stamp(4)
    e(f"s_and_b32 {s(sA)}, s83, 15", f"s_lshr_b32 {s(sSeg)}, s83, 4")
    outp(e,n+"o",n+"_fin",8)
    e.label(n+"_fin")
    if diag:
        stamp(5)
        e("s_waitcnt vmcnt(0)", "s_lshl_b32 s20, s82, 2", f"s_add_u32 s20, s20, {s(sW)}", "s_lshl_b32 s20, s20, 6", f"s_add_u32 s20, s20, {DBGT}", "v_mov_b32 v1, 0")
        for i,r in enumerate([84,86,88,90,92,94,sRetry,3,44,45,46,47]): e(f"v_mov_b32 v2, s{r}", f"buffer_store_dword v2, v1, s[8:11], s20 offen offset:{4*i}")
    e.label(n+"_end")
    e("s_endpgm")
    e.L=check(e.L,fix=True)
    return kernel_header(name)+e.text()+kernel_footer(name,nv=512,acc=256,nsgpr=102,kernarg=104)
if __name__=="__main__":
    mode=sys.argv[1] if len(sys.argv)>1 else "final"
    if mode=="final":
        ref=open("concat_heads__spectral_gfnet__memory_aug_recurrent_mem_tr__prompt.s.ref").read().split("\n")
        head=[l for l in ref if l.startswith(";") and "@launch" not in l]
        txt="\n".join(head)+"\n; @launch grid=(256,1,1) block=(256,1,1) lds=163840\n"+HEAD+gen()
        open("concat_heads__spectral_gfnet__memory_aug_recurrent_mem_tr__prompt.s","w").write(txt)
    else:
        variants=json.load(open("mvariants.json"))
        out=[f"; @launch kernel=mg{i}_kernel grid=(256,1,1) block=(256,1,1) lds=163840" for i in range(len(variants))]+[HEAD]
        for i,vv in enumerate(variants): out.append(gen(f"mg{i}_kernel",vv.get("T"),True,f"M{i}"))
        open("mg.s","w").write("\n".join(out))
```
